```python
import torch

def _softmax(x, axis=-1):
    return torch.softmax(x, dim=axis)
def _gelu(x):
    return torch.nn.functional.gelu(x, approximate="tanh")
def _silu(x):
    return torch.nn.functional.silu(x)
def _sigmoid(x):
    return torch.sigmoid(x)
def _layernorm(x, axis=-1, eps=1e-5):
    m = x.mean(dim=axis, keepdim=True)
    v = x.var(dim=axis, keepdim=True, unbiased=False)
    return (x - m) / torch.sqrt(v + eps)
def _scatter_add(tgt, idx, src, axis=0):
    return tgt.clone().index_add_(axis, idx, src)
def _segment_sum(src, seg, n):
    out = torch.zeros((n,) + src.shape[1:], dtype=src.dtype)
    return out.index_add_(0, seg, src)
def _pad(x, pw):
    flat = tuple(v for pair in reversed(pw) for v in pair)
    return torch.nn.functional.pad(x, flat)

kernel_name = 'standalone__mha_block_cached__near_ridge'

def setup_inputs():

    _w = (lambda a: (lambda t: t.to(torch.bfloat16) if t.is_floating_point() else t)(torch.as_tensor(a)))
    B, Sq, D = 8, 304, 512
    H, Sk, Dh = 32, 1024, 128
    return {
        "x": _w((lambda *s: torch.randn(*s, dtype=torch.bfloat16) * 0.8)(B, Sq, D)),
        "k_cache": _w((lambda *s: torch.randn(*s, dtype=torch.bfloat16) * 0.8)(B, H, Sk, Dh)),
        "v_cache": _w((lambda *s: torch.randn(*s, dtype=torch.bfloat16) * 0.05)(B, H, Sk, Dh)),
        "wq": _w((lambda *s: torch.randn(*s, dtype=torch.bfloat16) * 0.8)(D, H * Dh) * (D ** -0.5)),
        "wo": _w((lambda *s: torch.randn(*s, dtype=torch.bfloat16) * 0.05)(H * Dh, D) * ((H * Dh) ** -0.5)),
    }

def reference(x, k_cache, v_cache, wq, wo):
    B, Sq, D = x.shape
    H, Dh = 32, 128
    q = (lambda x, *d: x.permute(*d))((x @ wq).reshape(B, Sq, H, Dh), 0, 2, 1, 3)
    scores = torch.einsum("bhqd,bhkd->bhqk", q, k_cache) * (Dh ** -0.5)
    p = _softmax(scores, axis=-1)
    o = torch.einsum("bhqk,bhkd->bhqd", p, v_cache)
    return (lambda x, *d: x.permute(*d))(o, 0, 2, 1, 3).reshape(B, Sq, H * Dh) @ wo
```

```python
import re

A = 256

def rn(r, n=1):
    p = 'v' if r < A else 'a'
    i = r if r < A else r - A
    return f"{p}{i}" if n == 1 else f"{p}[{i}:{i+n-1}]"

def rng(r, n):
    return list(range(r, r + n))

class I:
    __slots__ = ("text", "kind", "rd", "wr", "srcc", "pre_wait", "post_wait", "tag", "m0w", "m0r", "sw", "sr", "own")
    def __init__(self, text, kind, rd=(), wr=(), srcc=(), tag=None, m0w=False, m0r=False, sw=(), sr=()):
        self.text = text; self.kind = kind
        self.rd = list(rd); self.wr = list(wr); self.srcc = list(srcc)
        self.pre_wait = None; self.post_wait = None; self.own = None
        self.tag = tag; self.m0w = m0w; self.m0r = m0r
        self.sw = list(sw); self.sr = list(sr)
    def __repr__(self):
        return self.text

def mfma(d, a, b, c):
    cs = "0" if c is None else rn(c, 4)
    return I(f"v_mfma_f32_16x16x32_bf16 {rn(d,4)}, {rn(a,4)}, {rn(b,4)}, {cs}", "mfma",
             rd=rng(a, 4) + rng(b, 4), wr=rng(d, 4), srcc=[] if c is None else rng(c, 4))
def valu(text, rd, wr, **kw): return I(text, "valu", rd=rd, wr=wr, **kw)
def v_exp(d, s): return I(f"v_exp_f32 {rn(d)}, {rn(s)}", "trans", rd=[s], wr=[d])
def v_rcp(d, s): return I(f"v_rcp_f32 {rn(d)}, {rn(s)}", "trans", rd=[s], wr=[d])
def v_add(d, a, b): return valu(f"v_add_f32 {rn(d)}, {rn(a)}, {rn(b)}", [a, b], [d])
def v_mul(d, a, b): return valu(f"v_mul_f32 {rn(d)}, {rn(a)}, {rn(b)}", [a, b], [d])
def v_muls(d, s, b): return valu(f"v_mul_f32 {rn(d)}, {s}, {rn(b)}", [b], [d])
def v_max(d, a, b): return valu(f"v_max_f32 {rn(d)}, {rn(a)}, {rn(b)}", [a, b], [d])
def v_max3(d, a, b, c): return valu(f"v_max3_f32 {rn(d)}, {rn(a)}, {rn(b)}, {rn(c)}", [a, b, c], [d])
def v_mov(d, s):
    if isinstance(s, int): return valu(f"v_mov_b32 {rn(d)}, {rn(s)}", [s], [d])
    return valu(f"v_mov_b32 {rn(d)}, {s}", [], [d])
def v_neg(d, s): return valu(f"v_sub_f32 {rn(d)}, 0, {rn(s)}", [s], [d])
def v_cvt(d, a, b): return valu(f"v_cvt_pk_bf16_f32 {rn(d)}, {rn(a)}, {rn(b)}", [a, b], [d])
def acc_wr(a, s):
    if isinstance(s, int): return valu(f"v_accvgpr_write_b32 {rn(a)}, {rn(s)}", [s], [a])
    return valu(f"v_accvgpr_write_b32 {rn(a)}, {s}", [], [a])
def acc_rd(d, a): return valu(f"v_accvgpr_read_b32 {rn(d)}, {rn(a)}", [a], [d])
def perm16(a, b): return I(f"v_permlane16_swap_b32 {rn(a)}, {rn(b)}", "perm", rd=[a, b], wr=[a, b])
def perm32(a, b): return I(f"v_permlane32_swap_b32 {rn(a)}, {rn(b)}", "perm", rd=[a, b], wr=[a, b])
def ds_r128(d, addr, off):
    assert 0 <= off < 65536, off
    return I(f"ds_read_b128 {rn(d,4)}, {rn(addr)} offset:{off}", "lds", rd=[addr], wr=rng(d, 4))
def ds_tr(d, addr, off):
    assert 0 <= off < 65536, off
    return I(f"ds_read_b64_tr_b16 {rn(d,2)}, {rn(addr)} offset:{off}", "lds", rd=[addr], wr=rng(d, 2))
def ds_w128(addr, s, off):
    assert 0 <= off < 65536, off
    return I(f"ds_write_b128 {rn(addr)}, {rn(s,4)} offset:{off}", "ldsw", rd=[addr] + rng(s, 4))
def ds_w32(addr, s, off):
    return I(f"ds_write_b32 {rn(addr)}, {rn(s)} offset:{off}", "ldsw", rd=[addr, s])
def ds_r32(d, addr, off):
    return I(f"ds_read_b32 {rn(d)}, {rn(addr)} offset:{off}", "lds", rd=[addr], wr=[d])
def dma(voff, srd, soff, off=0, tag=None, flags=""):
    assert 0 <= off < 4096
    o = f" offset:{off}" if off else ""
    return I(f"buffer_load_dwordx4 {rn(voff)}, s[{srd}:{srd+3}], {soff} offen{o}{flags} lds", "dma", rd=[voff], tag=tag, m0r=True)
def gload4(d, voff, srd, soff, off=0, tag=None, flags=""):
    assert 0 <= off < 4096
    o = f" offset:{off}" if off else ""
    return I(f"buffer_load_dwordx4 {rn(d,4)}, {rn(voff)}, s[{srd}:{srd+3}], {soff} offen{o}{flags}", "vload", rd=[voff], wr=rng(d, 4), tag=tag)
def gstore4(s, voff, srd, soff, off=0, tag=None, flags=""):
    assert 0 <= off < 4096
    o = f" offset:{off}" if off else ""
    return I(f"buffer_store_dwordx4 {rn(s,4)}, {rn(voff)}, s[{srd}:{srd+3}], {soff} offen{o}{flags}", "vstore", rd=[voff] + rng(s, 4), tag=tag)
def salu(text, m0w=False): return I(text, "salu", m0w=m0w or bool(re.match(r"\S+\s+m0\b", text)))
def nop(n): return I(f"s_nop {n}", "nop", tag=n)
def wait(vm=None, lgkm=None):
    t = "s_waitcnt"
    if vm is not None:
        assert 0 <= vm <= 63, vm
        t += f" vmcnt({vm})"
    if lgkm is not None:
        assert 0 <= lgkm <= 15
        t += f" lgkmcnt({lgkm})"
    return I(t, "wait", tag=(vm, lgkm))
def barrier(): return I("s_barrier", "barrier")
def label(name): return I(f"{name}:", "label")
def branch(text): return I(text, "branch")
def raw(text, kind="salu", rd=(), wr=(), **kw): return I(text, kind, rd=rd, wr=wr, **kw)
def comment(t): return I(f"; {t}", "label")

ORDER = {"salu": 0, "wait": 0, "barrier": 0, "branch": 9, "nop": 0, "lds": 1, "ldsw": 1, "dma": 1, "vload": 1, "vstore": 1,
         "valu": 2, "trans": 2, "perm": 2, "label": 9}

def weave(mfmas, gaps, keep_order=False):
    out = list(gaps.get(-1, []))
    for i, m in enumerate(mfmas):
        out.append(m)
        g = gaps.get(i, [])
        if not keep_order:
            g = sorted(g, key=lambda x: ORDER[x.kind])
        out.extend(g)
    extra = [k for k in gaps if k >= len(mfmas)]
    assert not extra, extra
    return out

def insert_lgkm(path):
    changed = True
    it = 0
    while changed:
        changed = False; it += 1
        assert it < 50
        pend = []
        last_mfma = None; pend_at_last = None
        for ins in path:
            if ins.pre_wait is not None:
                pend = pend[len(pend) - ins.pre_wait:] if ins.pre_wait < len(pend) else pend
                if ins.pre_wait == 0: pend = []
            touched = set(ins.rd) | set(ins.srcc) | (set(ins.wr) if ins.kind != "lds" else set())
            need = -1
            for k, p in enumerate(pend):
                if touched & set(p.wr): need = k
            if need >= 0:
                tgt = pend[need]
                done = False
                if ins.kind == "mfma" and last_mfma is not None and any(q is tgt for q in pend_at_last):
                    k = max(i for i, q in enumerate(pend_at_last) if q is tgt)
                    n = min(len(pend_at_last) - 1 - k, 15)
                    if last_mfma.post_wait is None or n < last_mfma.post_wait:
                        last_mfma.post_wait = n; changed = True
                    done = True
                if not done:
                    n = min(len(pend) - 1 - need, 15)
                    if ins.pre_wait is None or n < ins.pre_wait:
                        ins.pre_wait = n; changed = True
                pend = pend[need + 1:]
            if ins.kind == "wait" and ins.tag[1] is not None:
                n = ins.tag[1]
                pend = pend[len(pend) - n:] if n and n < len(pend) else ([] if n == 0 else pend)
            if ins.kind in ("lds", "ldsw"):
                pend.append(ins)
            if ins.kind in ("label", "branch") and not ins.text.startswith(";"):
                last_mfma = None
            if ins.kind == "mfma":
                last_mfma = ins; pend_at_last = list(pend)
                if ins.post_wait is not None:
                    n = ins.post_wait
                    pend = pend[len(pend) - n:] if n and n < len(pend) else ([] if n == 0 else pend)
                    pend_at_last = list(pend_at_last)

def expand(seq):
    out = []
    for ins in seq:
        if ins.pre_wait is not None: out.append(wait(lgkm=ins.pre_wait))
        out.append(ins)
        if ins.post_wait is not None: out.append(wait(lgkm=ins.post_wait))
    return out

def check_hazards(path, name=""):
    pos = 0
    mf_w = {}; va_w = {}; tr_w = {}; mf_c = {}; st_r = {}; m0 = -99; sg_w = {}
    mf_prev = {}
    errs = []
    for ins in path:
        if ins.kind == "label": continue
        k = ins.kind
        def need(d, r, n, what):
            if r in d and pos - d[r] - 1 < n:
                errs.append(f"{name}: {what} reg {rn(r)} dist {pos - d[r] - 1} < {n}: {ins.text}")
        if k == "mfma":
            for r in ins.rd: need(va_w, r, 2, "valu->mfma AB"); need(mf_w, r, 8, "mfma->mfma AB")
            for r in ins.srcc:
                need(va_w, r, 2, "valu->mfma C")
                if r in mf_w and mf_prev.get(r) != tuple(ins.srcc): need(mf_w, r, 6, "mfma->mfma C overlap")
        elif k in ("valu", "trans", "perm"):
            for r in ins.rd + ins.wr: need(mf_w, r, 8, "mfma->valu")
            for r in ins.wr: need(mf_c, r, 3, "mfma C WAR"); need(st_r, r, 2, "store WAR")
            if k != "trans":
                for r in ins.rd: need(tr_w, r, 1, "trans->valu")
            if k == "perm":
                for r in ins.rd: need(va_w, r, 2, "valu->perm")
            for s in ins.sr: need(sg_w, s, 2, "valu sgpr->valu")
        elif k in ("lds", "ldsw", "dma", "vload", "vstore"):
            for r in ins.rd + ins.wr: need(mf_w, r, 8, "mfma->mem")
            for r in ins.rd: need(tr_w, r, 1, "trans->mem")
            for r in ins.wr: need(st_r, r, 1, "store WAR (mem)")
            if ins.m0r and pos - m0 - 1 < 1: errs.append(f"{name}: m0->dma: {ins.text}")
        if k == "mfma":
            for r in ins.wr: mf_w[r] = pos; mf_prev[r] = tuple(ins.wr); va_w.pop(r, None)
            for r in ins.srcc: mf_c[r] = pos
        elif k in ("valu", "trans", "perm"):
            for r in ins.wr:
                va_w[r] = pos; mf_w.pop(r, None)
                if k == "trans": tr_w[r] = pos
                else: tr_w.pop(r, None)
            for s in ins.sw: sg_w[s] = pos
        elif k in ("vstore", ):
            for r in ins.rd[1:]: st_r[r] = pos
        if ins.m0w: m0 = pos
        pos += (ins.tag + 1) if k == "nop" else 1
    if errs:
        raise RuntimeError("\n".join(errs[:30]))

def vm_waits(seq, carry=()):
    pend = list(carry)
    for ins in seq:
        if ins.kind == "vmwait":
            needed = ins.tag
            last = -1
            for k, t in enumerate(pend):
                if t in needed: last = k
            n = len(pend) - 1 - last
            n = min(n, 63)
            lg = ins.rd[0] if ins.rd else None
            ins.rd = []
            w = wait(vm=n, lgkm=lg)
            ins.text = w.text; ins.kind = "wait"; ins.tag = w.tag
            pend = pend[len(pend) - n:] if n else []
        elif ins.kind == "wait" and ins.tag[0] is not None:
            n = ins.tag[0]
            pend = pend[len(pend) - n:] if n and n < len(pend) else ([] if n == 0 else pend)
        elif ins.kind in ("dma", "vload", "vstore"):
            pend.append(ins.tag)
    return pend
def vmwait(tags, lgkm=None):
    ORDER["vmwait"] = 0
    return I("<vmwait>", "vmwait", tag=set(tags), rd=[] if lgkm is None else [lgkm])

def text(seq):
    return "\n".join((i.text if i.kind == "label" else "    " + i.text) for i in seq) + "\n"
```

```python
import sys, math, struct, re
from asmlib import *

NAME = "standalone__mha_block_cached__near_ridge"
def f32bits(x): return struct.unpack("<I", struct.pack("<f", x))[0]
SCALE = f32bits(math.log2(math.e) / math.sqrt(128.0))

def QF(qt, ds): return 8 * (qt * 4 + ds)
def PF(par, qt, kb): return 8 * (par * 10 + qt * 2 + kb) + 4
def ACC(qt, dt): return 8 * (qt * 4 + (dt >> 1)) + 4 * (dt & 1)
def S(qt): return 160 + 4 * qt
def NEGM(qt): return 180 + 4 * qt
def L(qt): return 200 + qt
KA = 205; VA = 209; KD = 217; VD = 221; XD = 223; WD = 225; XA = 226; WA = 228; LANE = 236; LANE16 = 237; T = 238
def O(qt, dt): return A + 4 * (qt * 8 + dt)
def KF(ds): return A + 160 + 4 * ds
def VF(i): return A + 176 + 4 * i
def XF(par, qt, ks): return A + 160 + par * 40 + (qt * 2 + ks) * 4
def WF(par, ks): return A + 240 + par * 8 + ks * 4
SRD_X, SRD_WQ, SRD_K, SRD_V, SRD_WS = 4, 8, 12, 16, 20
LDS_K, LDS_V, LDS_X, LDS_WQ = 0, 65536, 32768, 114688
KVFLAGS = ""

def v(text, rd=(), wr=(), **kw): return valu(text, list(rd), list(wr), **kw)

def srd(dst, lo, hi, add_lo, nrec):
    o = []
    if add_lo is None:
        o += [salu(f"s_mov_b32 s{dst}, s{lo}"), salu(f"s_mov_b32 s{dst+1}, s{hi}")]
    else:
        o += [salu(f"s_add_u32 s{dst}, s{lo}, {add_lo}"), salu(f"s_addc_u32 s{dst+1}, s{hi}, 0")]
    o += [salu(f"s_mov_b32 s{dst+2}, {nrec}"), salu(f"s_mov_b32 s{dst+3}, 0x20000")]
    return o

def attn_setup():
    o = []
    o += [salu("s_cmp_ge_u32 s2, 256"), branch("s_cbranch_scc1 L_attn_end")]
    o += [raw("s_load_dwordx16 s[36:51], s[0:1], 0")]
    o += [v("v_and_b32 v236, 63, v0", [0], [LANE]), v("v_lshrrev_b32 v238, 6, v0", [0], [T]), nop(0),
          v("v_readfirstlane_b32 s24, v238", [T], [])]
    o += [salu("s_and_b32 s25, s2, 7"), salu("s_lshr_b32 s26, s2, 3")]
    l = LANE
    g, q, r, cc, t0, t1 = T, T + 1, T + 2, T + 3, T + 4, T + 5
    o += [v(f"v_lshlrev_b32 v{LANE16}, 4, v{l}", [l], [LANE16]),
          v(f"v_lshrrev_b32 v{g}, 4, v{l}", [l], [g]),
          v(f"v_and_b32 v{q}, 15, v{l}", [l], [q]),
          v(f"v_lshrrev_b32 v{r}, 2, v{q}", [q], [r]),
          v(f"v_and_b32 v{cc}, 3, v{l}", [l], [cc])]
    for par in range(2):
        o += [v(f"v_and_b32 v{t0}, 7, v{l}", [l], [t0]),
              v(f"v_xor_b32 v{t0}, v{t0}, v{g}", [t0, g], [t0]),
              v(f"v_xor_b32 v{t0}, {4*par}, v{t0}", [t0], [t0]),
              v(f"v_lshrrev_b32 v{t1}, 3, v{l}", [l], [t1]),
              v(f"v_lshlrev_b32 v{t1}, 10, v{t1}", [t1], [t1]),
              v(f"v_lshl_add_u32 v{XD+par}, v{t0}, 4, v{t1}", [t0, t1], [XD + par])]
    o += [salu("s_lshr_b32 s27, s24, 1"), salu("s_lshl_b32 s27, s27, 3"),
          v(f"v_lshlrev_b32 v{t0}, 1, v{g}", [g], [t0]),
          v(f"v_or_b32 v{t0}, s27, v{t0}", [t0], [t0]),
          v(f"v_xor_b32 v{t0}, v{t0}, v{q}", [t0, q], [t0]),
          v(f"v_lshlrev_b32 v{t1}, 13, v{g}", [g], [t1]),
          v(f"v_lshl_add_u32 v{WD}, v{t0}, 4, v{t1}", [t0, t1], [WD])]
    o += [raw("s_waitcnt lgkmcnt(0)", "wait", tag=(None, 0))]
    o += [salu("s_mul_i32 s27, s25, 311296")] + srd(SRD_X, 36, 37, "s27", 311296)
    o += [salu("s_lshl_b32 s27, s26, 8")] + srd(SRD_WQ, 42, 43, "s27", "0x3fe100")
    o += [salu("s_lshl_b32 s27, s25, 5"), salu("s_add_u32 s27, s27, s26"), salu("s_lshl_b32 s27, s27, 18")]
    o += srd(SRD_K, 38, 39, "s27", 262144) + srd(SRD_V, 40, 41, "s27", 262144)
    o += [salu("s_mul_i32 s28, s24, 81920"),
          salu("s_lshl_b32 s29, s24, 15"),
          salu("s_lshl_b32 s34, s24, 12"),
          salu("s_lshl_b32 s52, s24, 10"),
          salu("s_mul_i32 s35, s24, 10240"), salu(f"s_add_u32 s35, s35, {LDS_X}"),
          salu(f"s_mov_b32 s33, {SCALE:#x}")]
    return o

def attn_setup2():
    o = []
    l = LANE
    g, q, r, cc, t0, t1, f, t2 = T, T + 1, T + 2, T + 3, T + 4, T + 5, T + 6, T + 7
    o += [v(f"v_lshlrev_b32 v{t1}, 8, v{g}", [g], [t1])]
    for u in range(4):
        o += [v(f"v_xor_b32 v{t0}, v{q}, v{g}", [q, g], [t0]), v(f"v_xor_b32 v{t0}, {4*u}, v{t0}", [t0], [t0]),
              v(f"v_lshl_add_u32 v{KD+u}, v{t0}, 4, v{t1}", [t0, t1], [KD + u])]
    for par in range(2):
        o += [v(f"v_lshlrev_b32 v{t0}, 1, v{g}", [g], [t0]), v(f"v_xor_b32 v{t0}, v{t0}, v{q}", [t0, q], [t0]),
              v(f"v_xor_b32 v{t0}, {8*par}, v{t0}", [t0], [t0]),
              v(f"v_lshl_add_u32 v{VD+par}, v{t0}, 4, v{t1}", [t0, t1], [VD + par])]
    return o

def attn_setup3():
    o = []
    g, q, r, cc, t0, t1, f, t2 = T, T + 1, T + 2, T + 3, T + 4, T + 5, T + 6, T + 7
    for ks in range(2):
        o += [v(f"v_lshrrev_b32 v{t0}, 1, v{q}", [q], [t0]), v(f"v_xor_b32 v{t0}, v{t0}, v{g}", [t0, g], [t0]),
              v(f"v_xor_b32 v{t0}, {4*ks}, v{t0}", [t0], [t0]),
              v(f"v_lshlrev_b32 v{t1}, 7, v{q}", [q], [t1]), v(f"v_add_u32 v{t1}, s35, v{t1}", [t1], [t1]),
              v(f"v_lshl_add_u32 v{XA+ks}, v{t0}, 4, v{t1}", [t0, t1], [XA + ks])]
    o += [v(f"v_and_b32 v{f}, 1, v{g}", [g], [f]), v(f"v_lshl_add_u32 v{f}, v{f}, 2, v{r}", [f, r], [f]),
          v(f"v_lshlrev_b32 v{t2}, 3, v{cc}", [cc], [t2])]
    for base, reg, sh in ((LDS_WQ, WA, 3), (LDS_V, VA, 2)):
        o += [v(f"v_lshl_add_u32 v{t1}, v{g}, {sh}, v{r}", [g, r], [t1]),
              v(f"v_lshl_add_u32 v{t1}, v{t1}, 8, v{t2}", [t1, t2], [t1]),
              v(f"v_add_u32 v{t1}, {base:#x}, v{t1}", [t1], [t1])]
        for dt in range(8):
            o += [v(f"v_xor_b32 v{t0}, {dt}, v{f}", [f], [t0]),
                  v(f"v_lshl_add_u32 v{reg+dt}, v{t0}, 5, v{t1}", [t0, t1], [reg + dt])]
    o += [v(f"v_lshrrev_b32 v{t2}, 1, v{g}", [g], [t2]), v(f"v_and_b32 v{t0}, 1, v{g}", [g], [t0]),
          v(f"v_lshl_add_u32 v{t2}, v{t0}, 1, v{t2}", [t0, t2], [t2]),
          v(f"v_xor_b32 v{t2}, v{t2}, v{q}", [t2, q], [t2]),
          v(f"v_lshlrev_b32 v{t1}, 8, v{q}", [q], [t1])]
    for ds in range(4):
        o += [v(f"v_xor_b32 v{t0}, {4*ds}, v{t2}", [t2], [t0]),
              v(f"v_lshl_add_u32 v{KA+ds}, v{t0}, 4, v{t1}", [t0, t1], [KA + ds])]
    return o

def x_dma(c, NQ):
    items = []
    for n in range(2 * NQ):
        it = [salu(f"s_add_u32 m0, s35, {(c & 1) * 40960 + 1024 * n}"),
              salu(f"s_add_u32 s27, s28, {8192 * n + 128 * c}"),
              dma(XD + (n & 1), SRD_X, "s27", tag=f"x{c}")]
        items.append(it)
    return own(items)
def wq_dma(c):
    items = []
    for k in range(4):
        it = [salu(f"s_add_u32 m0, s52, {LDS_WQ + (c % 3) * 16384 + 4096 * k}"),
              salu(f"s_add_u32 s27, s29, {(64 * c + 16 * k) * 8192}"),
              dma(WD, SRD_WQ, "s27", tag=f"wq{c}")]
        items.append(it)
    return own(items)
def kv_dma(which, slot, soff_expr, tag):
    base = (LDS_K if which == "K" else LDS_V) + slot * 16384
    items = []
    for u in range(4):
        pre = []
        if u == 0:
            pre = [salu(f"s_add_u32 m0, s34, {base}"), salu(f"s_add_u32 s27, {soff_expr[0]}, {soff_expr[1]}")]
        d = dma(KD + u, SRD_K, "s27", 1024 * u, tag=tag, flags=KVFLAGS) if which == "K" else dma(VD + (u & 1), SRD_V, "s27", 1024 * u, tag=tag, flags=KVFLAGS)
        items.append(pre + [d])
    return own(items)

def own(items):
    cur = []
    for it in items:
        if len(it) > 1: cur = it[:-1]
        it[-1].own = list(cur)
    return items
def check_own(path):
    last = {}
    for ins in path:
        if ins.kind == "salu":
            m = re.match(r"\S+\s+(\w+),", ins.text)
            if m: last[m.group(1)] = ins
        if ins.own:
            for s in ins.own:
                d = re.match(r"\S+\s+(\w+),", s.text).group(1)
                assert last.get(d) is s, f"scalar set-up clobbered for {ins.text}: want {s.text}, have {last.get(d)}"

def flat(items):
    return [x for it in items for x in it]

def place_items(gaps, items, positions):
    for it, p in zip(items, positions):
        sc = it[:-1]
        for k, s in enumerate(sc):
            gaps.setdefault(p - len(sc) + 1 + k, []).append(s)
        gaps.setdefault(p, []).append(it[-1])

def qproj(NQ):
    o = []
    o += flat(x_dma(0, NQ)) + flat(wq_dma(0))
    o += attn_setup2()
    o += flat(x_dma(1, NQ)) + flat(wq_dma(1)) + flat(wq_dma(2))
    o += flat(kv_dma("K", 0, ("s34", 0), "K0")) + flat(kv_dma("K", 1, ("s34", 16384), "K1"))
    o += attn_setup3()
    zero = [acc_wr(O(qt, dt) + r, "0") for qt in range(NQ) for dt in range(8) for r in range(4)] + [v_mov(L(qt), "0") for qt in range(NQ)]
    o += zero
    def xreads(c): return [ds_r128(XF(c & 1, qt, ks), XA + ks, (c & 1) * 40960 + qt * 2048) for qt in range(NQ) for ks in range(2)]
    def wreads(c, dt):
        par = dt & 1
        return [ds_tr(WF(par, ks) + 2 * h, WA + dt, (c % 3) * 16384 + 8192 * ks + 1024 * h) for ks in range(2) for h in range(2)]
    o += [vmwait(["x0", "wq0"]), barrier()]
    o += wreads(0, 0) + xreads(0)
    G = 2 * NQ
    for c in range(8):
        mf = []
        for dt in range(8):
            for qt in range(NQ):
                for ks in range(2):
                    cc = None if (c == 0 and ks == 0) else ACC(qt, dt)
                    mf.append(mfma(ACC(qt, dt), WF(dt & 1, ks), XF(c & 1, qt, ks), cc))
        gaps = {}
        for dt in range(7):
            for k, rd in enumerate(wreads(c, dt + 1)):
                gaps.setdefault(dt * G + k, []).append(rd)
        if c + 2 <= 7:
            items = x_dma(c + 2, NQ)
            pos = [G + 2 + 3 * k for k in range(len(items))]
            place_items(gaps, items, pos)
        if c + 1 <= 7:
            gaps.setdefault(5 * G + 3, []).append(vmwait([f"x{c+1}"]))
            rds = xreads(c + 1)
            slots = [5 * G + 4 + k for k in range(G - 4)] + [6 * G + 4 + k for k in range(G - 4)]
            for rd, p in zip(rds, slots): gaps.setdefault(p, []).append(rd)
            assert len(slots) >= len(rds)
        need = [f"wq{c+1}"] if c < 7 else ["K0"]
        gaps.setdefault(7 * G - 1, []).extend([vmwait(need, lgkm=0), barrier()])
        if c < 7:
            for k, rd in enumerate(wreads(c + 1, 0)): gaps.setdefault(7 * G + k, []).append(rd)
        else:
            for ds in range(4): gaps.setdefault(7 * G + ds, []).append(ds_r128(KF(ds), KA + ds, 0))
        if 1 <= c and c + 2 <= 7:
            items = wq_dma(c + 2)
            place_items(gaps, items, [2, 5, 8, 5 * G - 1])
        if c == 7:
            items = (kv_dma("V", 0, ("s34", 0), "V0") + kv_dma("K", 2, ("s34", 2 * 16384), "K2") + kv_dma("V", 1, ("s34", 16384), "V1")
                     + kv_dma("K", 3, ("s34", 3 * 16384), "K3") + kv_dma("V", 2, ("s34", 2 * 16384), "V2"))
            place_items(gaps, items, [2 + 3 * k for k in range(len(items))])
        seq = weave(mf, gaps)
        o += [comment(f"qproj chunk {c}")] + seq
    o += [comment("Q convert"), nop(7)]
    for qt in range(NQ):
        for ds in range(4):
            R = QF(qt, ds)
            o += [v_muls(R + k, "s33", R + k) for k in range(8)]
            o += [v_cvt(R + k, R + 2 * k, R + 2 * k + 1) for k in range(4)]
    for qt in range(NQ):
        for ds in range(4):
            R = QF(qt, ds)
            o += [perm16(R, R + 2), perm16(R + 1, R + 3)]
    o += [nop(1)]
    return o

OFF = 7
def sm_items(NQ, p, kt):
    par = p & 1
    out = []
    for n in range(4 * NQ):
        qt, r = divmod(n, 4)
        s = S(qt) + r
        out.append((OFF + 2 * n, v_exp(s, s)))
        out.append((OFF + 2 * n + 1, v_add(L(qt), s, L(qt))))
        if r & 1:
            out.append((OFF + 2 * n + 1, v_cvt(PF(par, qt, kt >> 1) + 2 * (kt & 1) + (r >> 1), s - 1, s)))
    return out
def qk_group(NQ, kf, first=False):
    return [mfma(S(qt), kf(ds), QF(qt, ds), (None if first else NEGM(qt)) if ds == 0 else S(qt)) for qt in range(NQ) for ds in range(4)]
def pv_group(NQ, w, par, vf):
    return [mfma(O(qt, 2 * w + d), vf(2 * d + kb), PF(par, qt, kb), O(qt, 2 * w + d)) for d in range(2) for qt in range(NQ) for kb in range(2)]
def k_reads(slot, kt, kf): return [ds_r128(kf(ds), KA + ds, slot * 16384 + kt * 4096) for ds in range(4)]
def v_reads(slot, w, vf):
    return [ds_tr(vf(2 * d + kb) + 2 * h, VA + 2 * w + d, slot * 16384 + kb * 8192 + h * 4096) for d in range(2) for kb in range(2) for h in range(2)]

def period(NQ, p, nvm):
    W = 8 * NQ; H = 4 * NQ
    mf = []; gaps = {}
    def put(g, ins): gaps.setdefault(g, []).append(ins)
    for g, ins in sm_items(NQ, p - 1, 3):
        if g >= W: put(g - W, ins)
    for w in range(4):
        b = w * W
        mf += qk_group(NQ, KF) + pv_group(NQ, w, (p - 1) & 1, VF)
        for g, ins in sm_items(NQ, p, w):
            if b + g < 4 * W: put(b + g, ins)
        vr = v_reads((p - 1) & 3, w, VF)
        if NQ == 5:
            vpos = [0, 4, 8, 12, 14, 16, 18, 20]
            kpos = [24, 28, 32, 36] if w < 3 else [28, 30, 32, 36]
            bar = 26
        else:
            vpos = [0, 2, 4, 8, 10, 12, 14, 16]
            kpos = [20, 22, 24, 28] if w < 3 else [22, 24, 26, 28]
            bar = 20
        for g, ins in zip(vpos, vr): put(b + g, ins)
        kr = k_reads(p & 3, w + 1, KF) if w < 3 else k_reads((p + 1) & 3, 0, KF)
        for g, ins in zip(kpos, kr): put(b + g, ins)
        if w == 3:
            put(b + bar, wait(vm=nvm, lgkm=0)); put(b + bar + 1, barrier())
    items = kv_dma("K", (p + 3) & 3, ("s30", 3 * 16384), "kv") + kv_dma("V", (p + 2) & 3, ("s30", 2 * 16384), "kv")
    pos = [6 + k * (3 * W // 8 // 4 * 4 + 0) for k in range(8)]
    place_items(gaps, items, pos)
    put(4 * W - 3, salu("s_add_u32 s30, s30, 16384"))
    return [comment(f"period p%4={p & 3}")] + weave(mf, gaps)

def period0(NQ, nvm):
    o = [comment("period 0")]
    W = 8 * NQ; H = 4 * NQ
    o += [salu("s_add_u32 s30, s34, 16384")]
    gaps = {}
    for ds, rd in enumerate(k_reads(0, 1, VF)): gaps[2 * ds] = [rd]
    o += weave(qk_group(NQ, KF, first=True), gaps)
    a, b2 = T, T + 1
    for qt in range(NQ):
        s = S(qt); a = T + 2 * qt; b2 = a + 1
        if qt == NQ - 1: o += [nop(3)]
        o += [v_max3(a, s, s + 1, s + 2), v_max(a, a, s + 3), v_mov(b2, a)]
    o += [nop(1)]
    for qt in range(NQ): o += [perm16(T + 2 * qt, T + 2 * qt + 1)]
    for qt in range(NQ):
        a = T + 2 * qt
        o += [v_max(a, a, a + 1), v_mov(a + 1, a)]
    o += [nop(1)]
    for qt in range(NQ): o += [perm32(T + 2 * qt, T + 2 * qt + 1)]
    for qt in range(NQ):
        a = T + 2 * qt
        o += [v_max(a, a, a + 1)] + [v_neg(NEGM(qt) + r, a) for r in range(4)] + [v_add(S(qt) + r, S(qt) + r, NEGM(qt)) for r in range(4)]
    elems = []
    for kt in range(4):
        per = {}
        for g, ins in sm_items(NQ, 0, kt):
            if kt == 3 and g >= W: continue
            per.setdefault((g - OFF) // 2, []).append(ins)
        for n in range(4 * NQ): elems.append(per.get(n, []))
    sk = []
    for n in range(len(elems) + 1):
        cur = []
        if n < len(elems): cur += [x for x in elems[n] if x.kind == "trans"]
        if n >= 1: cur += [x for x in elems[n - 1] if x.kind != "trans"]
        sk.append(cur)
    LAG = 9
    for n in range(LAG): o += sk[n]
    mf = qk_group(NQ, VF) + qk_group(NQ, KF) + qk_group(NQ, VF)
    gaps = {}
    for i in range(len(mf)): gaps[i] = list(sk[LAG + i])
    for ds, rd in enumerate(k_reads(0, 2, KF)): gaps[2 * ds].append(rd)
    for ds, rd in enumerate(k_reads(0, 3, VF)): gaps[H + 2 * ds].append(rd)
    gaps[2 * H + 2].append(wait(vm=nvm, lgkm=0)); gaps[2 * H + 3].append(barrier())
    for ds, rd in enumerate(k_reads(1, 0, KF)): gaps[2 * H + 4 + 2 * ds].append(rd)
    o += weave(mf, gaps)
    for n in range(LAG + len(mf), len(sk)): o += sk[n]
    return o

def tail(NQ):
    o = [comment("tail: PV(15)")]
    W = 8 * NQ; H = 4 * NQ
    p = 16
    o += v_reads(3, 0, VF)
    sp = sorted([(g, k, ins) for k, (g, ins) in enumerate(sm_items(NQ, 15, 3)) if g >= W], key=lambda x: (x[0], x[1]))
    for g, k, ins in sp:
        o += [ins]
        if ins.kind == "trans": o += [nop(0)]
    o += [nop(1)]
    mf = []; gaps = {}
    for w in range(4):
        vf = VF if (w & 1) == 0 else KF
        mf += pv_group(NQ, w, 1, vf)
        if w < 3:
            nvf = KF if (w & 1) == 0 else VF
            for k, rd in enumerate(v_reads(3, w + 1, nvf)): gaps.setdefault(w * H + k, []).append(rd)
    o += weave(mf, gaps)
    return o

def epilogue(NQ):
    o = [comment("epilogue")]
    for qt in range(NQ): o += [v_mov(T + qt, L(qt))]
    o += [nop(1)]
    for qt in range(NQ): o += [perm16(L(qt), T + qt)]
    for qt in range(NQ): o += [v_add(L(qt), L(qt), T + qt), v_mov(T + qt, L(qt))]
    o += [nop(1)]
    for qt in range(NQ): o += [perm32(L(qt), T + qt)]
    for qt in range(NQ): o += [v_add(L(qt), L(qt), T + qt)]
    for qt in range(NQ): o += [v_rcp(L(qt), L(qt))]
    o += [salu("s_mul_i32 s27, s25, 20"), salu("s_mul_i32 s32, s24, 5"), salu("s_add_u32 s27, s27, s32"),
          salu("s_lshl_b32 s27, s27, 5"), salu("s_add_u32 s27, s27, s26"), salu("s_lshl_b32 s27, s27, 12")]
    o += srd(SRD_WS, 50, 51, "s27", 5 * 131072)
    for qt in range(NQ):
        o += [salu(f"s_mov_b32 s27, {qt * 131072}")]
        for m in range(4):
            R = 8 * (qt * 4 + m)
            o += [acc_rd(R + k, O(qt, 2 * m) + k) for k in range(8)]
            o += [v_mul(R + k, R + k, L(qt)) for k in range(8)]
            o += [v_cvt(R + k, R + 2 * k, R + 2 * k + 1) for k in range(4)]
            o += [gstore4(R, LANE16, SRD_WS, "s27", 1024 * m, tag="o")]
    return o

def attn_kernel():
    NQ = 5; nvm = 16
    pre = attn_setup() + qproj(NQ) + period0(NQ, nvm)
    vm_waits(pre)
    body = [label("L_loop")]
    for p in (1, 2, 3):
        body += period(NQ, p, nvm)
    ex = [salu("s_sub_u32 s31, s31, 1"), salu("s_cmp_eq_u32 s31, 0"), branch("s_cbranch_scc1 L_tail")]
    body3 = body + ex
    body4 = period(NQ, 4, nvm) + [branch("s_branch L_loop")]
    pre += [salu("s_mov_b32 s31, 4")]
    post = [label("L_tail")] + tail(NQ) + [nop(7)] + epilogue(NQ)
    path = pre + body3 + body4 + body3 + body4 + body3 + post
    insert_lgkm(path)
    check_hazards(expand(path), "attn"); check_own(path)
    seq = expand(pre) + [raw(".p2align 6", "label")] + expand(body3 + body4 + post) + [label("L_attn_end"), raw("s_endpgm")]
    return seq

def oproj_kernel():
    NQ = 5
    o = []
    SRD_O, SRD_WO, SRD_OUT = 4, 8, 12
    LN, L16, WDM, WR, TT = 0 + 250, 251, 252, 244, 236
    def OACC(nt, t): return 4 * (t * 4 + nt)
    def OFR(buf, t, mm): return A + buf * 40 + (t * 2 + mm) * 4
    def AFR(par, mm): return A + 160 + par * 8 + mm * 4
    NB = 4
    o += [salu("s_cmp_ge_u32 s2, 256"), branch("s_cbranch_scc1 L_op_end")]
    o += [raw("s_load_dwordx16 s[36:51], s[0:1], 0")]
    o += [v(f"v_and_b32 v{LN}, 63, v0", [0], [LN]), v(f"v_lshrrev_b32 v{TT}, 6, v0", [0], [TT]), v(f"v_mov_b32 v253, v0", [0], [253]),
          v(f"v_readfirstlane_b32 s24, v{TT}", [TT], [])]
    o += [salu("s_and_b32 s25, s2, 7"), salu("s_lshr_b32 s26, s2, 3"), salu("s_and_b32 s28, s26, 7"), salu("s_lshr_b32 s29, s26, 3")]
    g, q, r, cc, t0, t1, f = TT, TT + 1, TT + 2, TT + 3, TT + 4, TT + 5, TT + 6
    o += [v(f"v_lshlrev_b32 v{L16}, 4, v{LN}", [LN], [L16]),
          v(f"v_lshrrev_b32 v{g}, 4, v{LN}", [LN], [g]), v(f"v_and_b32 v{q}, 15, v{LN}", [LN], [q]),
          v(f"v_lshrrev_b32 v{r}, 2, v{q}", [q], [r]), v(f"v_and_b32 v{cc}, 3, v{LN}", [LN], [cc])]
    o += [v(f"v_lshlrev_b32 v{t0}, 1, v{g}", [g], [t0]), v(f"v_and_b32 v{t1}, 7, v{LN}", [LN], [t1]),
          v(f"v_xor_b32 v{t0}, v{t0}, v{t1}", [t0, t1], [t0]),
          v(f"v_lshrrev_b32 v{t1}, 3, v{LN}", [LN], [t1]), v(f"v_lshlrev_b32 v{t1}, 10, v{t1}", [t1], [t1]),
          v(f"v_lshl_add_u32 v{WDM}, v{t0}, 4, v{t1}", [t0, t1], [WDM])]
    o += [salu("s_lshl_b32 s35, s24, 15")]
    o += [v(f"v_and_b32 v{f}, 1, v{g}", [g], [f]), v(f"v_lshrrev_b32 v{t0}, 1, v{r}", [r], [t0]),
          v(f"v_lshl_add_u32 v{f}, v{f}, 1, v{t0}", [f, t0], [f]),
          v(f"v_lshl_add_u32 v{t1}, v{g}, 2, v{r}", [g, r], [t1]), v(f"v_lshlrev_b32 v{t1}, 7, v{t1}", [t1], [t1]),
          v(f"v_lshl_add_u32 v{t1}, v{cc}, 3, v{t1}", [cc, t1], [t1]), v(f"v_add_u32 v{t1}, s35, v{t1}", [t1], [t1])]
    for nt in range(4):
        o += [v(f"v_xor_b32 v{t0}, {nt}, v{f}", [f], [t0]), v(f"v_lshl_add_u32 v{WR+nt}, v{t0}, 5, v{t1}", [t0, t1], [WR + nt])]
    o += [raw("s_waitcnt lgkmcnt(0)", "wait", tag=(None, 0))]
    o += [salu("s_mul_i32 s27, s25, 20"), salu("s_mul_i32 s32, s29, 5"), salu("s_add_u32 s27, s27, s32"),
          salu("s_lshl_b32 s27, s27, 17"), salu("s_add_u32 s27, s27, s35")]
    o += srd(SRD_O, 50, 51, "s27", 5 * 131072)
    o += [salu("s_lshl_b32 s27, s24, 20"), salu("s_lshl_b32 s32, s28, 7"), salu("s_add_u32 s27, s27, s32")]
    o += srd(SRD_WO, 44, 45, "s27", 1023 * 1024 + 128)
    o += [salu("s_mul_i32 s27, s25, 311296")] + srd(SRD_OUT, 46, 47, "s27", 311296)
    def loads(s):
        items = []
        for n in range(8):
            items.append([salu(f"s_add_u32 m0, s35, {(s % NB) * 8192 + 1024 * n}"), salu(f"s_mov_b32 s27, {(64 * s + 8 * n) * 1024}"),
                          dma(WDM, SRD_WO, "s27", tag=f"s{s}")])
        for t in range(NQ):
            for mm in range(2):
                pre = [salu(f"s_mov_b32 s30, {t * 131072 + (s >> 1) * 4096}")] if mm == 0 else []
                items.append(pre + [gload4(OFR(s % NB, t, mm), L16, SRD_O, "s30", ((s & 1) * 2 + mm) * 1024, tag=f"s{s}")])
        return own(items)
    def areads(s, nt):
        return [ds_tr(AFR(nt & 1, mm) + 2 * h, WR + nt, (s % NB) * 8192 + (32 * mm + 16 * h) * 128) for mm in range(2) for h in range(2)]
    for s in range(3): o += flat(loads(s))
    o += [vmwait(["s0"])] + areads(0, 0)
    G = 2 * NQ
    for s in range(16):
        mf = []
        for nt in range(4):
            for t in range(NQ):
                for mm in range(2):
                    c = None if (s == 0 and mm == 0) else OACC(nt, t)
                    mf.append(mfma(OACC(nt, t), AFR(nt & 1, mm), OFR(s % NB, t, mm), c))
        gaps = {}
        for nt in range(3):
            for k, rd in enumerate(areads(s, nt + 1)): gaps.setdefault(nt * G + k, []).append(rd)
        if s < 15:
            gaps.setdefault(3 * G - 1, []).append(vmwait([f"s{s+1}"]))
            for k, rd in enumerate(areads(s + 1, 0)): gaps.setdefault(3 * G + k, []).append(rd)
        if s + 3 < 16:
            items = loads(s + 3)
            place_items(gaps, items, [2 + 2 * k for k in range(len(items))])
        o += [comment(f"oproj step {s}")] + weave(mf, gaps)
    o += [comment("reduce"), barrier(), nop(7)]
    PW = 80 * 272
    o += [salu(f"s_mul_i32 s27, s24, {PW}"),
          v(f"v_mul_u32_u24 v{t0}, 272, v{q}", [q], [t0]), v(f"v_lshl_add_u32 v{t0}, v{g}, 4, v{t0}", [g, t0], [t0]),
          v(f"v_add_u32 v{t0}, s27, v{t0}", [t0], [t0])]
    for t in range(NQ):
        for nt in range(4):
            o += [ds_w128(t0, OACC(nt, t), t * 16 * 272 + nt * 64)]
    o += [wait(lgkm=0), barrier()]
    tid = 253
    o += [v(f"v_lshrrev_b32 v{t0}, 3, v{tid}", [tid], [t0]), v(f"v_and_b32 v{t1}, 7, v{tid}", [tid], [t1]),
          v(f"v_mul_u32_u24 v{f}, 272, v{t0}", [t0], [f]), v(f"v_lshl_add_u32 v{f}, v{t1}, 5, v{f}", [t1, f], [f]),
          v(f"v_add_u32 v{r}, {2*PW}, v{f}", [f], [r]),
          v(f"v_lshlrev_b32 v{t0}, 10, v{t0}", [t0], [t0]), v(f"v_lshl_add_u32 v{t0}, v{t1}, 4, v{t0}", [t1, t0], [t0]),
          salu("s_mul_i32 s27, s29, 81920"), salu("s_lshl_b32 s32, s28, 7"), salu("s_add_u32 s27, s27, s32")]
    for rnd in range(3):
        if rnd == 2:
            o += [salu("s_cmp_ge_u32 s24, 2"), branch("s_cbranch_scc1 L_op_end"), salu("s_cmp_ge_u32 s29, 3"), branch("s_cbranch_scc1 L_op_end")]
        R = 80 + rnd * 32
        for w in range(4):
            for h in range(2):
                o += [ds_r128(R + w * 8 + h * 4, f if w < 2 else r, (w & 1) * PW + rnd * 32 * 272 + h * 16)]
        for k in range(8):
            o += [v_add(R + k, R + k, R + 8 + k), v_add(R + 16 + k, R + 16 + k, R + 24 + k)]
        for k in range(8): o += [v_add(R + k, R + k, R + 16 + k)]
        o += [v_cvt(R + k, R + 2 * k, R + 2 * k + 1) for k in range(4)]
        o += [gstore4(R, t0, SRD_OUT, "s27"), salu("s_add_u32 s27, s27, 32768")]
    vm_waits(o)
    insert_lgkm(o)
    check_hazards(expand(o), "oproj"); check_own(o)
    return expand(o) + [label("L_op_end"), raw("s_endpgm")]

def kd(name, nv=512, acc=256):
    return f""".section .rodata,"a"
.p2align 6
.amdhsa_kernel {name}
  .amdhsa_next_free_vgpr {nv}
  .amdhsa_next_free_sgpr 102
  .amdhsa_accum_offset {acc}
  .amdhsa_group_segment_fixed_size 0
  .amdhsa_kernarg_size 64
  .amdhsa_user_sgpr_count 2
  .amdhsa_user_sgpr_kernarg_segment_ptr 1
  .amdhsa_system_sgpr_workgroup_id_x 1
  .amdhsa_float_denorm_mode_32 3
.end_amdhsa_kernel
"""
def kstart(name):
    return f".text\n.globl {name}\n.p2align 8\n.type {name},@function\n{name}:\n"

def main():
    out = sys.argv[1] if len(sys.argv) > 1 else f"cdna_kernels/{NAME}.s"
    hdr = open(f"cdna_kernels/{NAME}.s.ref").read().split("; Override launch")[0]
    k1 = f"{NAME}_kernel"; k2 = "oproj_kernel"
    s = hdr
    s += f"; @launch kernel={k1} grid=(256,1,1) block=(256,1,1) lds=163840\n"
    s += f"; @launch kernel={k2} grid=(256,1,1) block=(256,1,1) lds=131072\n"
    s += '.amdgcn_target "amdgcn-amd-amdhsa--gfx950"\n'
    s += kstart(k1) + text(attn_kernel()) + kstart(k2) + text(oproj_kernel()) + kd(k1) + kd(k2)
    open(out, "w").write(s)
    print("wrote", out, len(s), "bytes")
main()
```

```python
import re

A = 256

def rn(r, n=1):
    p = 'v' if r < A else 'a'
    i = r if r < A else r - A
    return f"{p}{i}" if n == 1 else f"{p}[{i}:{i+n-1}]"

def rng(r, n):
    return list(range(r, r + n))

class I:
    __slots__ = ("text", "kind", "rd", "wr", "srcc", "pre_wait", "post_wait", "tag", "m0w", "m0r", "sw", "sr", "own")
    def __init__(self, text, kind, rd=(), wr=(), srcc=(), tag=None, m0w=False, m0r=False, sw=(), sr=()):
        self.text = text; self.kind = kind
        self.rd = list(rd); self.wr = list(wr); self.srcc = list(srcc)
        self.pre_wait = None; self.post_wait = None; self.own = None
        self.tag = tag; self.m0w = m0w; self.m0r = m0r
        self.sw = list(sw); self.sr = list(sr)
    def __repr__(self):
        return self.text

def mfma(d, a, b, c):
    cs = "0" if c is None else rn(c, 4)
    return I(f"v_mfma_f32_16x16x32_bf16 {rn(d,4)}, {rn(a,4)}, {rn(b,4)}, {cs}", "mfma",
             rd=rng(a, 4) + rng(b, 4), wr=rng(d, 4), srcc=[] if c is None else rng(c, 4))
def valu(text, rd, wr, **kw): return I(text, "valu", rd=rd, wr=wr, **kw)
def v_exp(d, s): return I(f"v_exp_f32 {rn(d)}, {rn(s)}", "trans", rd=[s], wr=[d])
def v_rcp(d, s): return I(f"v_rcp_f32 {rn(d)}, {rn(s)}", "trans", rd=[s], wr=[d])
def v_add(d, a, b): return valu(f"v_add_f32 {rn(d)}, {rn(a)}, {rn(b)}", [a, b], [d])
def v_mul(d, a, b): return valu(f"v_mul_f32 {rn(d)}, {rn(a)}, {rn(b)}", [a, b], [d])
def v_muls(d, s, b): return valu(f"v_mul_f32 {rn(d)}, {s}, {rn(b)}", [b], [d])
def v_max(d, a, b): return valu(f"v_max_f32 {rn(d)}, {rn(a)}, {rn(b)}", [a, b], [d])
def v_max3(d, a, b, c): return valu(f"v_max3_f32 {rn(d)}, {rn(a)}, {rn(b)}, {rn(c)}", [a, b, c], [d])
def v_mov(d, s):
    if isinstance(s, int): return valu(f"v_mov_b32 {rn(d)}, {rn(s)}", [s], [d])
    return valu(f"v_mov_b32 {rn(d)}, {s}", [], [d])
def v_neg(d, s): return valu(f"v_sub_f32 {rn(d)}, 0, {rn(s)}", [s], [d])
def v_cvt(d, a, b): return valu(f"v_cvt_pk_bf16_f32 {rn(d)}, {rn(a)}, {rn(b)}", [a, b], [d])
def acc_wr(a, s):
    if isinstance(s, int): return valu(f"v_accvgpr_write_b32 {rn(a)}, {rn(s)}", [s], [a])
    return valu(f"v_accvgpr_write_b32 {rn(a)}, {s}", [], [a])
def acc_rd(d, a): return valu(f"v_accvgpr_read_b32 {rn(d)}, {rn(a)}", [a], [d])
def perm16(a, b): return I(f"v_permlane16_swap_b32 {rn(a)}, {rn(b)}", "perm", rd=[a, b], wr=[a, b])
def perm32(a, b): return I(f"v_permlane32_swap_b32 {rn(a)}, {rn(b)}", "perm", rd=[a, b], wr=[a, b])
def ds_r128(d, addr, off):
    assert 0 <= off < 65536, off
    return I(f"ds_read_b128 {rn(d,4)}, {rn(addr)} offset:{off}", "lds", rd=[addr], wr=rng(d, 4))
def ds_tr(d, addr, off):
    assert 0 <= off < 65536, off
    return I(f"ds_read_b64_tr_b16 {rn(d,2)}, {rn(addr)} offset:{off}", "lds", rd=[addr], wr=rng(d, 2))
def ds_w128(addr, s, off):
    assert 0 <= off < 65536, off
    return I(f"ds_write_b128 {rn(addr)}, {rn(s,4)} offset:{off}", "ldsw", rd=[addr] + rng(s, 4))
def ds_w32(addr, s, off):
    return I(f"ds_write_b32 {rn(addr)}, {rn(s)} offset:{off}", "ldsw", rd=[addr, s])
def ds_r32(d, addr, off):
    return I(f"ds_read_b32 {rn(d)}, {rn(addr)} offset:{off}", "lds", rd=[addr], wr=[d])
def dma(voff, srd, soff, off=0, tag=None, flags=""):
    assert 0 <= off < 4096
    o = f" offset:{off}" if off else ""
    return I(f"buffer_load_dwordx4 {rn(voff)}, s[{srd}:{srd+3}], {soff} offen{o}{flags} lds", "dma", rd=[voff], tag=tag, m0r=True)
def gload4(d, voff, srd, soff, off=0, tag=None, flags=""):
    assert 0 <= off < 4096
    o = f" offset:{off}" if off else ""
    return I(f"buffer_load_dwordx4 {rn(d,4)}, {rn(voff)}, s[{srd}:{srd+3}], {soff} offen{o}{flags}", "vload", rd=[voff], wr=rng(d, 4), tag=tag)
def gstore4(s, voff, srd, soff, off=0, tag=None, flags=""):
    assert 0 <= off < 4096
    o = f" offset:{off}" if off else ""
    return I(f"buffer_store_dwordx4 {rn(s,4)}, {rn(voff)}, s[{srd}:{srd+3}], {soff} offen{o}{flags}", "vstore", rd=[voff] + rng(s, 4), tag=tag)
def salu(text, m0w=False): return I(text, "salu", m0w=m0w or bool(re.match(r"\S+\s+m0\b", text)))
def nop(n): return I(f"s_nop {n}", "nop", tag=n)
def wait(vm=None, lgkm=None):
    t = "s_waitcnt"
    if vm is not None:
        assert 0 <= vm <= 63, vm
        t += f" vmcnt({vm})"
    if lgkm is not None:
        assert 0 <= lgkm <= 15
        t += f" lgkmcnt({lgkm})"
    return I(t, "wait", tag=(vm, lgkm))
def barrier(): return I("s_barrier", "barrier")
def label(name): return I(f"{name}:", "label")
def branch(text): return I(text, "branch")
def raw(text, kind="salu", rd=(), wr=(), **kw): return I(text, kind, rd=rd, wr=wr, **kw)
def comment(t): return I(f"; {t}", "label")

ORDER = {"salu": 0, "wait": 0, "barrier": 0, "branch": 9, "nop": 0, "lds": 1, "ldsw": 1, "dma": 1, "vload": 1, "vstore": 1,
         "valu": 2, "trans": 2, "perm": 2, "label": 9}

def weave(mfmas, gaps, keep_order=False):
    out = list(gaps.get(-1, []))
    for i, m in enumerate(mfmas):
        out.append(m)
        g = gaps.get(i, [])
        if not keep_order:
            g = sorted(g, key=lambda x: ORDER[x.kind])
        out.extend(g)
    extra = [k for k in gaps if k >= len(mfmas)]
    assert not extra, extra
    return out

def insert_lgkm(path):
    changed = True
    it = 0
    while changed:
        changed = False; it += 1
        assert it < 50
        pend = []
        last_mfma = None; pend_at_last = None
        for ins in path:
            if ins.pre_wait is not None:
                pend = pend[len(pend) - ins.pre_wait:] if ins.pre_wait < len(pend) else pend
                if ins.pre_wait == 0: pend = []
            touched = set(ins.rd) | set(ins.srcc) | (set(ins.wr) if ins.kind != "lds" else set())
            need = -1
            for k, p in enumerate(pend):
                if touched & set(p.wr): need = k
            if need >= 0:
                tgt = pend[need]
                done = False
                if ins.kind == "mfma" and last_mfma is not None and any(q is tgt for q in pend_at_last):
                    k = max(i for i, q in enumerate(pend_at_last) if q is tgt)
                    n = min(len(pend_at_last) - 1 - k, 15)
                    if last_mfma.post_wait is None or n < last_mfma.post_wait:
                        last_mfma.post_wait = n; changed = True
                    done = True
                if not done:
                    n = min(len(pend) - 1 - need, 15)
                    if ins.pre_wait is None or n < ins.pre_wait:
                        ins.pre_wait = n; changed = True
                pend = pend[need + 1:]
            if ins.kind == "wait" and ins.tag[1] is not None:
                n = ins.tag[1]
                pend = pend[len(pend) - n:] if n and n < len(pend) else ([] if n == 0 else pend)
            if ins.kind in ("lds", "ldsw"):
                pend.append(ins)
            if ins.kind in ("label", "branch") and not ins.text.startswith(";"):
                last_mfma = None
            if ins.kind == "mfma":
                last_mfma = ins; pend_at_last = list(pend)
                if ins.post_wait is not None:
                    n = ins.post_wait
                    pend = pend[len(pend) - n:] if n and n < len(pend) else ([] if n == 0 else pend)
                    pend_at_last = list(pend_at_last)

def expand(seq):
    out = []
    for ins in seq:
        if ins.pre_wait is not None: out.append(wait(lgkm=ins.pre_wait))
        out.append(ins)
        if ins.post_wait is not None: out.append(wait(lgkm=ins.post_wait))
    return out

def check_hazards(path, name=""):
    pos = 0
    mf_w = {}; va_w = {}; tr_w = {}; mf_c = {}; st_r = {}; m0 = -99; sg_w = {}
    mf_prev = {}
    errs = []
    for ins in path:
        if ins.kind == "label": continue
        k = ins.kind
        def need(d, r, n, what):
            if r in d and pos - d[r] - 1 < n:
                errs.append(f"{name}: {what} reg {rn(r)} dist {pos - d[r] - 1} < {n}: {ins.text}")
        if k == "mfma":
            for r in ins.rd: need(va_w, r, 2, "valu->mfma AB"); need(mf_w, r, 8, "mfma->mfma AB")
            for r in ins.srcc:
                need(va_w, r, 2, "valu->mfma C")
                if r in mf_w and mf_prev.get(r) != tuple(ins.srcc): need(mf_w, r, 6, "mfma->mfma C overlap")
        elif k in ("valu", "trans", "perm"):
            for r in ins.rd + ins.wr: need(mf_w, r, 8, "mfma->valu")
            for r in ins.wr: need(mf_c, r, 3, "mfma C WAR"); need(st_r, r, 2, "store WAR")
            if k != "trans":
                for r in ins.rd: need(tr_w, r, 1, "trans->valu")
            if k == "perm":
                for r in ins.rd: need(va_w, r, 2, "valu->perm")
            for s in ins.sr: need(sg_w, s, 2, "valu sgpr->valu")
        elif k in ("lds", "ldsw", "dma", "vload", "vstore"):
            for r in ins.rd + ins.wr: need(mf_w, r, 8, "mfma->mem")
            for r in ins.rd: need(tr_w, r, 1, "trans->mem")
            for r in ins.wr: need(st_r, r, 1, "store WAR (mem)")
            if ins.m0r and pos - m0 - 1 < 1: errs.append(f"{name}: m0->dma: {ins.text}")
        if k == "mfma":
            for r in ins.wr: mf_w[r] = pos; mf_prev[r] = tuple(ins.wr); va_w.pop(r, None)
            for r in ins.srcc: mf_c[r] = pos
        elif k in ("valu", "trans", "perm"):
            for r in ins.wr:
                va_w[r] = pos; mf_w.pop(r, None)
                if k == "trans": tr_w[r] = pos
                else: tr_w.pop(r, None)
            for s in ins.sw: sg_w[s] = pos
        elif k in ("vstore", ):
            for r in ins.rd[1:]: st_r[r] = pos
        if ins.m0w: m0 = pos
        pos += (ins.tag + 1) if k == "nop" else 1
    if errs:
        raise RuntimeError("\n".join(errs[:30]))

def vm_waits(seq, carry=()):
    pend = list(carry)
    for ins in seq:
        if ins.kind == "vmwait":
            needed = ins.tag
            last = -1
            for k, t in enumerate(pend):
                if t in needed: last = k
            n = len(pend) - 1 - last
            n = min(n, 63)
            lg = ins.rd[0] if ins.rd else None
            ins.rd = []
            w = wait(vm=n, lgkm=lg)
            ins.text = w.text; ins.kind = "wait"; ins.tag = w.tag
            pend = pend[len(pend) - n:] if n else []
        elif ins.kind == "wait" and ins.tag[0] is not None:
            n = ins.tag[0]
            pend = pend[len(pend) - n:] if n and n < len(pend) else ([] if n == 0 else pend)
        elif ins.kind in ("dma", "vload", "vstore"):
            pend.append(ins.tag)
    return pend
def vmwait(tags, lgkm=None):
    ORDER["vmwait"] = 0
    return I("<vmwait>", "vmwait", tag=set(tags), rd=[] if lgkm is None else [lgkm])

def text(seq):
    return "\n".join((i.text if i.kind == "label" else "    " + i.text) for i in seq) + "\n"

def lgwait(tags):
    ORDER["lgwait"] = 0
    return I("<lgwait>", "lgwait", tag=set(tags))
def lg_waits(seq):
    hist = []
    for ins in seq:
        if ins.kind == "lgwait":
            last = -1
            for k, t in enumerate(hist):
                if t in ins.tag: last = k
            assert last >= 0, ins.tag
            n = min(len(hist) - 1 - last, 15)
            w = wait(lgkm=n)
            ins.text = w.text; ins.kind = "wait"; ins.tag = w.tag
        elif ins.kind in ("lds", "ldsw"):
            hist.append(ins.tag)
def tagged(ins, tag):
    ins.tag = tag
    return ins
```

```python
import sys, math, struct, re
from asmlib import *

NAME = "standalone__mha_block_cached__near_ridge"
def f32bits(x): return struct.unpack("<I", struct.pack("<f", x))[0]
SCALE = f32bits(math.log2(math.e) / math.sqrt(128.0))
def opt(name, default):
    for a in sys.argv:
        if a.startswith("--" + name + "="): return a.split("=", 1)[1]
    return default
def fl(x): return "".join(" " + t for t in x.split(",") if t)
KVFLAGS = fl(opt("kv", "nt")); XFLAGS = fl(opt("x", "nt")); PFFLAGS = fl(opt("pf", "nt")); WQFLAGS = fl(opt("wq", ""))
WOFLAGS = fl(opt("wo", "")); WO0FLAGS = fl(opt("wo0", "")); WOPFFLAGS = fl(opt("wopf", "")); OLDFLAGS = fl(opt("old", "sc1"))
ROT = int(opt("rot", "1")); XPF = int(opt("xpf", "1")); WOPF = int(opt("wop", "1")); FORCE_SLOW = int(opt("slow", "0"))
TS = "--ts" in sys.argv

def QF(qt, ds): return 8 * (qt * 4 + ds)
def PF(par, qt, kb): return 8 * (par * 10 + qt * 2 + kb) + 4
def ACC(qt, dt): return 8 * (qt * 4 + (dt >> 1)) + 4 * (dt & 1)
def S(qt): return 160 + 4 * qt
def NEGM(qt): return 180 + 4 * qt
def L(qt): return 200 + qt
KA = 205; VA = 209; KD = 217; VD = 221; XD = 223; WD = 225; XA = 226; WA = 228; LANE = 236; LANE16 = 237
G_, Q_, R_, C_ = 238, 239, 240, 241
T = 242
PFV, DUMMY, L0V, HSV = 252, 253, 254, 255
WOD = 223; WR = 224
def O(qt, dt): return A + 4 * (qt * 8 + dt)
def KF(ds): return A + 160 + 4 * ds
def VF(i): return A + 176 + 4 * i
def XF(par, qt, ks): return A + 160 + par * 40 + (qt * 2 + ks) * 4
def WF(par, ks): return A + 240 + par * 8 + ks * 4
SRD_X, SRD_WQ, SRD_K, SRD_V, SRD_DBG, SRD_WO, SRD_WOP = 4, 8, 12, 16, 20, 56, 60
SRD_FL, SRD_OW, SRD_OR, SRD_OUT = 4, 8, 12, 16
SX, SW = 86, 94
LDS_K, LDS_V, LDS_X, LDS_WQ = 0, 65536, 32768, 114688
UB = [131072, 147456, 0, 16384, 65536, 32768, 81920, 49152, 98304, 114688]
FLAG_OFF = 32 << 20
OOB = "0x7ffffff0"

def v(text, rd=(), wr=(), **kw): return valu(text, list(rd), list(wr), **kw)
def ts(k): return [raw(f"s_memtime s[{64+2*k}:{65+2*k}]")] if TS else []
def tsr(k): return [raw(f"s_memrealtime s[{64+2*k}:{65+2*k}]")] if TS else []
def srd(dst, lo, hi, add_lo, nrec):
    o = []
    if add_lo is None:
        o += [salu(f"s_mov_b32 s{dst}, s{lo}"), salu(f"s_mov_b32 s{dst+1}, s{hi}")]
    else:
        o += [salu(f"s_add_u32 s{dst}, s{lo}, {add_lo}"), salu(f"s_addc_u32 s{dst+1}, s{hi}, 0")]
    o += [salu(f"s_mov_b32 s{dst+2}, {nrec}"), salu(f"s_mov_b32 s{dst+3}, 0x20000")]
    return o
def ts_dump(n, base_mb):
    if not TS: return []
    o = [raw("s_waitcnt vmcnt(0) lgkmcnt(0)", "wait", tag=(0, 0))] + ts(n - 2) + tsr(n - 1) + [raw("s_waitcnt lgkmcnt(0)", "wait", tag=(None, 0))]
    o += [salu("s_lshl_b32 s32, s2, 2"), salu("s_add_u32 s32, s32, s24"), salu("s_lshl_b32 s32, s32, 6"), salu(f"s_add_u32 s32, s32, {base_mb << 20}")]
    o += srd(60, 50, 51, "s32", 64)
    o += [v("v_mov_b32 v1, 0", [], [1])]
    for k in range(n):
        o += [v(f"v_mov_b32 v0, s{64+2*k}", [], [0]), raw(f"buffer_store_dword v0, v1, s[60:63], 0 offen offset:{4*k}", "vstore", rd=[1]), nop(1)]
    return o

def own(items):
    cur = []
    for it in items:
        if len(it) > 1:
            new = {re.match(r"\S+\s+(\w+),", s.text).group(1): s for s in cur}
            for s in it[:-1]: new[re.match(r"\S+\s+(\w+),", s.text).group(1)] = s
            cur = list(new.values())
        it[-1].own = list(cur)
    return items
def check_own(path):
    last = {}
    for ins in path:
        if ins.kind == "salu":
            m = re.match(r"\S+\s+(\w+),", ins.text)
            if m: last[m.group(1)] = ins
        if ins.own:
            for s in ins.own:
                d = re.match(r"\S+\s+(\w+),", s.text).group(1)
                assert last.get(d) is s, f"scalar set-up clobbered for {ins.text}: want {s.text}, have {last.get(d)}"
def flat(items): return [x for it in items for x in it]
def place_items(gaps, items, positions):
    assert len(positions) >= len(items)
    for it, p in zip(items, positions):
        sc = it[:-1]
        for k, s in enumerate(sc):
            gaps.setdefault(p - len(sc) + 1 + k, []).append(s)
        gaps.setdefault(p, []).append(it[-1])

def x_dma(c, NQ):
    return own([[salu(f"s_add_u32 m0, s35, {(c & 1) * 40960 + 1024 * n}"), salu(f"s_add_u32 s27, s{SX + c}, {8192 * n}"),
                 dma(XD + (n & 1), SRD_X, "s27", tag=f"x{c}", flags=XFLAGS)] for n in range(2 * NQ)])
def wq_dma(c):
    return own([[salu(f"s_add_u32 m0, s52, {LDS_WQ + (c % 3) * 16384 + 4096 * k}"), salu(f"s_add_u32 s27, s{SW + c}, {16 * k * 8192}"),
                 dma(WD, SRD_WQ, "s27", tag=f"wq{c}", flags=WQFLAGS)] for k in range(4)])
def kv_dma(which, slot, soff_expr, tag):
    base = (LDS_K if which == "K" else LDS_V) + slot * 16384
    items = []
    for u in range(4):
        pre = [salu(f"s_add_u32 m0, s34, {base}"), salu(f"s_add_u32 s27, {soff_expr[0]}, {soff_expr[1]}")] if u == 0 else []
        d = dma(KD + u, SRD_K, "s27", 1024 * u, tag=tag, flags=KVFLAGS) if which == "K" else dma(VD + (u & 1), SRD_V, "s27", 1024 * u, tag=tag, flags=KVFLAGS)
        items.append(pre + [d])
    return own(items)
def wo_dma(s):
    items = []
    for n in range(4):
        pre = [salu(f"s_add_u32 m0, s34, {UB[s % 10]}")] if n == 0 else []
        pre += [salu(f"s_mov_b32 s27, {s * 32768 + 7168 * n}")]
        items.append(pre + [dma(WOD, SRD_WO, "s27", 1024 * n, tag=f"wo{s}", flags=WOFLAGS if s >= 8 else WO0FLAGS)])
    return own(items)
def AF(s, nt):
    sl = s % 16
    return (16 * sl if sl < 10 else A + 160 + 16 * (sl - 10)) + 4 * nt
def wo_reads(s):
    ub = UB[s % 10]
    return [tagged(ds_tr(AF(s, nt) + 2 * h, WR + 4 * (ub >> 16) + nt, (ub & 0xffff) + 2048 * h), f"wr{s}") for nt in range(4) for h in range(2)]

def setup():
    o = []
    o += [salu("s_cmp_ge_u32 s2, 256"), branch("s_cbranch_scc1 L_end")]
    o += ts(0) + tsr(1)
    o += [raw("s_load_dwordx16 s[36:51], s[0:1], 0")]
    o += [v(f"v_and_b32 v{LANE}, 63, v0", [0], [LANE]), v(f"v_lshrrev_b32 v{T}, 6, v0", [0], [T]), nop(0),
          v(f"v_readfirstlane_b32 s24, v{T}", [T], [])]
    o += [salu("s_and_b32 s25, s2, 7"), salu("s_lshr_b32 s26, s2, 3")]
    l = LANE; g, q, r, cc, t0, t1 = G_, Q_, R_, C_, T, T + 1
    o += [v(f"v_lshlrev_b32 v{LANE16}, 4, v{l}", [l], [LANE16]), v(f"v_lshrrev_b32 v{g}, 4, v{l}", [l], [g]),
          v(f"v_and_b32 v{q}, 15, v{l}", [l], [q]), v(f"v_lshrrev_b32 v{r}, 2, v{q}", [q], [r]), v(f"v_and_b32 v{cc}, 3, v{l}", [l], [cc]),
          v(f"v_lshlrev_b32 v{PFV}, 7, v{l}", [l], [PFV])]
    o += [v(f"v_and_b32 v{t0}, 7, v{l}", [l], [t0]), v(f"v_xor_b32 v{t0}, v{t0}, v{g}", [t0, g], [t0]),
          v(f"v_lshrrev_b32 v{t1}, 3, v{l}", [l], [t1]), v(f"v_lshlrev_b32 v{t1}, 10, v{t1}", [t1], [t1]),
          v(f"v_lshl_add_u32 v{XD}, v{t0}, 4, v{t1}", [t0, t1], [XD]), v(f"v_xor_b32 v{XD+1}, 64, v{XD}", [XD], [XD + 1])]
    o += [salu("s_lshr_b32 s27, s24, 1"), salu("s_lshl_b32 s27, s27, 3"),
          v(f"v_lshlrev_b32 v{t0}, 1, v{g}", [g], [t0]), v(f"v_or_b32 v{t0}, s27, v{t0}", [t0], [t0]),
          v(f"v_xor_b32 v{t0}, v{t0}, v{q}", [t0, q], [t0]), v(f"v_lshlrev_b32 v{t1}, 13, v{g}", [g], [t1]),
          v(f"v_lshl_add_u32 v{WD}, v{t0}, 4, v{t1}", [t0, t1], [WD])]
    o += [v(f"v_mov_b32 v{T+3}, {OOB}", [], [T + 3]), v(f"v_cmp_gt_u32 vcc, 19, v{l}", [l], []), nop(1),
          v(f"v_cndmask_b32 v{T+2}, v{T+3}, v{PFV}, vcc", [T + 3, PFV], [T + 2]),
          v(f"v_cmp_eq_u32 vcc, 0, v{l}", [l], []), nop(1),
          v(f"v_cndmask_b32 v{L0V}, v{T+3}, v{l}, vcc", [T + 3, l], [L0V])]
    o += [salu("s_mul_i32 s28, s24, 81920"), salu("s_lshl_b32 s29, s24, 15"), salu("s_lshl_b32 s34, s24, 12"), salu("s_lshl_b32 s52, s24, 10"),
          salu("s_mul_i32 s35, s24, 10240"), salu(f"s_add_u32 s35, s35, {LDS_X}"), salu(f"s_mov_b32 s33, {SCALE:#x}")]
    for c in range(8):
        rot = "s25" if ROT else "0"
        o += [salu(f"s_add_u32 s27, {rot}, {c}"), salu("s_and_b32 s27, s27, 7"),
              salu(f"s_lshl_b32 s32, s27, 7"), salu(f"s_add_u32 s{SX + c}, s28, s32"),
              salu(f"s_lshl_b32 s32, s27, 19"), salu(f"s_add_u32 s{SW + c}, s29, s32")]
        if c == 0:
            o += [raw("s_waitcnt lgkmcnt(0)", "wait", tag=(None, 0))]
            o += [salu("s_lshl_b32 s27, s26, 8")] + srd(SRD_WQ, 42, 43, "s27", "0x3fe100")
            o += flat(wq_dma(0))
            o += [salu("s_mul_i32 s27, s25, 311296")] + srd(SRD_X, 36, 37, "s27", 311296)
            if XPF:
                o += [salu("s_lshl_b32 s27, s26, 2"), salu("s_add_u32 s27, s27, s24"), salu("s_mul_i32 s27, s27, 2432"),
                      raw(f"buffer_load_dword v{DUMMY}, v{T+2}, s[{SRD_X}:{SRD_X+3}], s27 offen{PFFLAGS}", "vload", rd=[T + 2], wr=[DUMMY], tag="pf")]
            global X0REST
            x0 = x_dma(0, 5)
            o += flat(x0[:3]); X0REST = x0[3:]
    o += [salu("s_lshl_b32 s27, s25, 5"), salu("s_add_u32 s27, s27, s26"), salu("s_lshl_b32 s27, s27, 18")]
    o += srd(SRD_K, 38, 39, "s27", 262144) + srd(SRD_V, 40, 41, "s27", 262144)
    o += [salu("s_lshr_b32 s55, s26, 3"), salu("s_and_b32 s54, s26, 7")]
    o += [salu("s_lshl_b32 s27, s24, 20"), salu("s_lshl_b32 s32, s54, 7"), salu("s_add_u32 s27, s27, s32")]
    o += srd(SRD_WO, 44, 45, "s27", 1023 * 1024 + 128) + srd(SRD_WOP, 44, 45, None, 4 << 20)
    o += [v(f"v_lshlrev_b32 v{t1}, 8, v{g}", [g], [t1]), v(f"v_xor_b32 v{t0}, v{q}, v{g}", [q, g], [t0]),
          v(f"v_lshl_add_u32 v{KD}, v{t0}, 4, v{t1}", [t0, t1], [KD])]
    o += [v(f"v_xor_b32 v{KD+u}, {64*u:#x}, v{KD}", [KD], [KD + u]) for u in range(1, 4)]
    o += [v(f"v_lshlrev_b32 v{t0}, 1, v{g}", [g], [t0]), v(f"v_xor_b32 v{t0}, v{t0}, v{q}", [t0, q], [t0]),
          v(f"v_lshl_add_u32 v{VD}, v{t0}, 4, v{t1}", [t0, t1], [VD]), v(f"v_xor_b32 v{VD+1}, 0x80, v{VD}", [VD], [VD + 1])]
    o += [v(f"v_lshrrev_b32 v{t0}, 1, v{q}", [q], [t0]), v(f"v_xor_b32 v{t0}, v{t0}, v{g}", [t0, g], [t0]),
          v(f"v_lshlrev_b32 v{t1}, 7, v{q}", [q], [t1]), v(f"v_add_u32 v{t1}, s35, v{t1}", [t1], [t1]),
          v(f"v_lshl_add_u32 v{XA}, v{t0}, 4, v{t1}", [t0, t1], [XA]), v(f"v_xor_b32 v{XA+1}, 64, v{XA}", [XA], [XA + 1])]
    f, t2 = T + 4, T + 5
    o += [v(f"v_and_b32 v{f}, 1, v{g}", [g], [f]), v(f"v_lshl_add_u32 v{f}, v{f}, 2, v{r}", [f, r], [f]),
          v(f"v_lshlrev_b32 v{t2}, 3, v{cc}", [cc], [t2]), v(f"v_lshl_add_u32 v{t2}, v{f}, 5, v{t2}", [f, t2], [t2])]
    for base, reg, sh in ((LDS_WQ, WA, 3), (LDS_V, VA, 2)):
        o += [v(f"v_lshl_add_u32 v{t1}, v{g}, {sh}, v{r}", [g, r], [t1]), v(f"v_lshl_add_u32 v{t1}, v{t1}, 8, v{t2}", [t1, t2], [t1]),
              v(f"v_add_u32 v{reg}, {base:#x}, v{t1}", [t1], [reg])]
        o += [v(f"v_xor_b32 v{reg+dt}, {32*dt:#x}, v{reg}", [reg], [reg + dt]) for dt in range(1, 8)]
    o += [v(f"v_lshrrev_b32 v{t2}, 1, v{g}", [g], [t2]), v(f"v_and_b32 v{t0}, 1, v{g}", [g], [t0]),
          v(f"v_lshl_add_u32 v{t2}, v{t0}, 1, v{t2}", [t0, t2], [t2]), v(f"v_xor_b32 v{t2}, v{t2}, v{q}", [t2, q], [t2]),
          v(f"v_lshlrev_b32 v{t1}, 8, v{q}", [q], [t1]), v(f"v_lshl_add_u32 v{KA}, v{t2}, 4, v{t1}", [t2, t1], [KA])]
    o += [v(f"v_xor_b32 v{KA+ds}, {64*ds:#x}, v{KA}", [KA], [KA + ds]) for ds in range(1, 4)]
    return o

def flag_off(dst):
    return [salu(f"s_lshl_b32 {dst}, s25, 2"), salu(f"s_add_u32 {dst}, {dst}, s24"), salu(f"s_lshl_b32 {dst}, {dst}, 2"),
            salu(f"s_add_u32 {dst}, {dst}, s55"), salu(f"s_lshl_b32 {dst}, {dst}, 5"), salu(f"s_add_u32 {dst}, {dst}, s54"),
            salu(f"s_lshl_b32 {dst}, {dst}, 2")]

def wo_addr():
    g, q, r, cc, l, t0, t1 = G_, Q_, R_, C_, LANE, T, T + 1
    o = [v(f"v_lshlrev_b32 v{t0}, 1, v{g}", [g], [t0]), v(f"v_and_b32 v{t1}, 7, v{l}", [l], [t1]), v(f"v_xor_b32 v{t0}, v{t0}, v{t1}", [t0, t1], [t0]),
         v(f"v_lshrrev_b32 v{t1}, 3, v{l}", [l], [t1]), v(f"v_lshlrev_b32 v{t1}, 10, v{t1}", [t1], [t1]),
         v(f"v_lshl_add_u32 v{WOD}, v{t0}, 4, v{t1}", [t0, t1], [WOD])]
    o += [v(f"v_and_b32 v{t0}, 1, v{g}", [g], [t0]), v(f"v_lshrrev_b32 v{t1}, 1, v{r}", [r], [t1]),
          v(f"v_lshl_add_u32 v{t0}, v{t0}, 1, v{t1}", [t0, t1], [t0]),
          v(f"v_lshl_add_u32 v{t1}, v{g}, 2, v{r}", [g, r], [t1]), v(f"v_lshlrev_b32 v{t1}, 7, v{t1}", [t1], [t1]),
          v(f"v_lshl_add_u32 v{t1}, v{cc}, 3, v{t1}", [cc, t1], [t1]), v(f"v_lshl_add_u32 v{t1}, v{t0}, 5, v{t1}", [t0, t1], [t1]),
          v(f"v_add_u32 v{WR}, s34, v{t1}", [t1], [WR])]
    o += [v(f"v_xor_b32 v{WR+nt}, {32*nt:#x}, v{WR}", [WR], [WR + nt]) for nt in range(1, 4)]
    for reg in range(1, 3):
        o += [v(f"v_add_u32 v{WR+4*reg+nt}, {65536*reg:#x}, v{WR+nt}", [WR + nt], [WR + 4 * reg + nt]) for nt in range(4)]
    return o

def qproj(NQ):
    o = []
    o += flat(X0REST)
    o += srd(SRD_DBG, 50, 51, hex(FLAG_OFF), 16384) + flag_off("s53")
    o += [v(f"v_mov_b32 v{HSV}, 0", [], [HSV]),
          raw(f"buffer_store_dword v{HSV}, v{L0V}, s[{SRD_DBG}:{SRD_DBG+3}], s53 offen sc0 sc1", "vstore", rd=[L0V], tag="clr")]
    zero = [acc_wr(O(qt, dt) + r, "0") for qt in range(NQ) for dt in range(8) for r in range(4)] + [v_mov(L(qt), "0") for qt in range(NQ)]
    o += flat(wq_dma(1))
    def xreads(c): return [ds_r128(XF(c & 1, qt, ks), XA + ks, (c & 1) * 40960 + qt * 2048) for qt in range(NQ) for ks in range(2)]
    def wreads(c, dt):
        return [ds_tr(WF(dt & 1, ks) + 2 * h, WA + dt, (c % 3) * 16384 + 8192 * ks + 1024 * h) for ks in range(2) for h in range(2)]
    o += ts(2) + [vmwait(["x0", "wq0"]), barrier()] + ts(3)
    o += wreads(0, 0) + xreads(0)
    G = 2 * NQ
    for c in range(8):
        mf = []
        for dt in range(8):
            for qt in range(NQ):
                for ks in range(2):
                    cc = None if (c == 0 and ks == 0) else ACC(qt, dt)
                    mf.append(mfma(ACC(qt, dt), WF(dt & 1, ks), XF(c & 1, qt, ks), cc))
        gaps = {}
        for dt in range(7):
            for k, rd in enumerate(wreads(c, dt + 1)): gaps.setdefault(dt * G + k, []).append(rd)
        if c == 0:
            items = x_dma(1, NQ) + wq_dma(2)
            pos = [1 + 2 * k for k in range(len(items))]
            it2 = x_dma(2, NQ)
            items += it2; pos += [pos[-1] + 4 + 4 * k for k in range(len(it2))]
        elif c + 2 <= 7:
            xs = x_dma(c + 2, NQ); ws = wq_dma(c + 2)
            items = [ws[0], ws[1]] + xs[:3] + [ws[2]] + xs[3:6] + [ws[3]] + xs[6:]
            pos = [2, 7] + [G + 2 + 5 * k for k in range(len(items) - 2)]
        elif c == 6:
            items = kv_dma("K", 0, ("s34", 0), "K0") + kv_dma("K", 1, ("s34", 16384), "K1")
            pos = [2 + 9 * k for k in range(len(items))]
        else:
            items = kv_dma("V", 0, ("s34", 0), "V0")
            pos = [2 + 18 * k for k in range(len(items))]
        place_items(gaps, items, pos)
        if c + 1 <= 7:
            gaps.setdefault(4 * G + 5, []).append(vmwait([f"x{c+1}"]))
            rds = xreads(c + 1)
            slots = [4 * G + 6 + k for k in range(G - 6)] + [5 * G + 4 + k for k in range(G - 4)]
            assert len(slots) >= len(rds)
            for rd, p in zip(rds, slots): gaps.setdefault(p, []).append(rd)
        need = [f"wq{c+1}", "clr"] if c < 7 else ["K0"]
        gaps.setdefault(7 * G - 1, []).extend([vmwait(need, lgkm=0), barrier()])
        if c < 7:
            for k, rd in enumerate(wreads(c + 1, 0)): gaps.setdefault(7 * G + k, []).append(rd)
        else:
            for ds in range(4): gaps.setdefault(7 * G + ds, []).append(ds_r128(KF(ds), KA + ds, 0))
        if c in (1, 2, 3):
            for k, z in enumerate(zero[(c - 1) * 60:c * 60]): gaps.setdefault(4 + k, []).append(z)
        o += [comment(f"qproj chunk {c}")] + weave(mf, gaps)
    o += ts(4) + [comment("Q convert")]
    o += srd(SRD_FL, 50, 51, hex(FLAG_OFF), 16384) + srd(SRD_DBG, 48, 49, None, 256)
    o += [raw("s_getreg_b32 s28, hwreg(HW_REG_XCC_ID)"), salu("s_cmp_lt_u32 s28, 8"), salu("s_cselect_b32 s32, 1, 0x100"),
          salu("s_and_b32 s28, s28, 7"), salu("s_lshl_b32 s27, s25, 3"), salu("s_add_u32 s27, s27, s28"), salu("s_lshl_b32 s27, s27, 2"),
          salu("s_cmp_eq_u32 s24, 0"), salu("s_cselect_b32 s27, s27, 0x1000"),
          v(f"v_mov_b32 v{HSV}, s32", [], [HSV]),
          raw(f"buffer_atomic_add v{HSV}, v{L0V}, s[{SRD_DBG}:{SRD_DBG+3}], s27 offen sc1", "vstore", rd=[L0V], tag="arr")]
    o += wo_addr()
    k2 = kv_dma("K", 2, ("s34", 2 * 16384), "K2")
    for qt in range(NQ):
        if qt < 4: o += k2[qt]
        for ds in range(4):
            R = QF(qt, ds)
            o += [v_muls(R + k, "s33", R + k) for k in range(8)]
            o += [v_cvt(R + k, R + 2 * k, R + 2 * k + 1) for k in range(4)]
    for qt in range(NQ):
        for ds in range(4):
            R = QF(qt, ds)
            o += [perm16(R, R + 2), perm16(R + 1, R + 3)]
    o += [nop(1)]
    return o

OFF = 7
def sm_items(NQ, p, kt):
    par = p & 1
    out = []
    for n in range(4 * NQ):
        qt, r = divmod(n, 4)
        s = S(qt) + r
        out.append((OFF + 2 * n, v_exp(s, s)))
        out.append((OFF + 2 * n + 1, v_add(L(qt), s, L(qt))))
        if r & 1:
            out.append((OFF + 2 * n + 1, v_cvt(PF(par, qt, kt >> 1) + 2 * (kt & 1) + (r >> 1), s - 1, s)))
    return out
def qk_group(NQ, kf, first=False):
    return [mfma(S(qt), kf(ds), QF(qt, ds), (None if first else NEGM(qt)) if ds == 0 else S(qt)) for qt in range(NQ) for ds in range(4)]
def pv_group(NQ, w, par, vf):
    return [mfma(O(qt, 2 * w + d), vf(2 * d + kb), PF(par, qt, kb), O(qt, 2 * w + d)) for d in range(2) for qt in range(NQ) for kb in range(2)]
def k_reads(slot, kt, kf): return [ds_r128(kf(ds), KA + ds, slot * 16384 + kt * 4096) for ds in range(4)]
def v_reads(slot, w, vf):
    return [ds_tr(vf(2 * d + kb) + 2 * h, VA + 2 * w + d, slot * 16384 + kb * 8192 + h * 4096) for d in range(2) for kb in range(2) for h in range(2)]

def period(NQ, p, items, barwait, extra=None, last=False):
    W = 8 * NQ
    mf = []; gaps = {}
    def put(g, ins): gaps.setdefault(g, []).append(ins)
    for g, ins in sm_items(NQ, p - 1, 3):
        if g >= W: put(g - W, ins)
    for w in range(4):
        b = w * W
        mf += qk_group(NQ, KF) + pv_group(NQ, w, (p - 1) & 1, VF)
        for g, ins in sm_items(NQ, p, w):
            if b + g < 4 * W: put(b + g, ins)
        vr = v_reads((p - 1) & 3, w, VF)
        vpos = [0, 4, 8, 12, 14, 16, 18, 20]
        kpos = [24, 28, 32, 36] if w < 3 else [28, 30, 32, 36]
        bar = 26
        for g, ins in zip(vpos, vr): put(b + g, ins)
        if w < 3: kr = k_reads(p & 3, w + 1, KF)
        elif not last: kr = k_reads((p + 1) & 3, 0, KF)
        else: kr = v_reads(p & 3, 0, KF)[:4]; kr2 = v_reads(p & 3, 0, KF)[4:]
        for g, ins in zip(kpos, kr): put(b + g, ins)
        if w == 3 and last:
            for g, ins in zip([34, 37, 38, 39], kr2): put(b + g, ins)
        if w == 3:
            put(b + bar, barwait); put(b + bar + 1, barrier())
    step = (3 * W + 16) // max(len(items), 1) // 4 * 4
    place_items(gaps, items, [6 + k * step for k in range(len(items))])
    if extra:
        for g, ins in extra: put(g, ins)
    return [comment(f"period {p}")] + weave(mf, gaps)

def loop_period(NQ, p):
    W = 8 * NQ
    items = kv_dma("K", (p + 2) & 3, ("s30", 2 * 16384), "kv") + kv_dma("V", (p + 1) & 3, ("s30", 16384), "kv")
    extra = [(4 * W - 3, salu("s_add_u32 s30, s30, 16384"))]
    n = len(items)
    if WOPF and (p & 1) == 0:
        extra += [(3 * W + 24, raw(f"buffer_load_dword v{DUMMY}, v{PFV}, s[{SRD_WOP}:{SRD_WOP+3}], s29 offen{WOPFFLAGS}", "vload", rd=[PFV], wr=[DUMMY], tag="kv")),
                  (4 * W - 5, salu("s_add_u32 s29, s29, 0x40000"))]
        if WOPF == 3 and p == 2:
            extra += [(4 * W - 4, salu("s_cmp_eq_u32 s31, 2")), (4 * W - 4, salu("s_cselect_b32 s29, s3, s29"))]
        n += 1
    return period(NQ, p, items, wait(vm=n, lgkm=0), extra)

def period0(NQ):
    o = [comment("period 0")] + ts(5)
    W = 8 * NQ; H = 4 * NQ
    o += [salu("s_add_u32 s30, s34, 16384")]
    o += [salu("s_lshl_b32 s29, s24, 20"), salu("s_lshl_b32 s32, s26, 13"), salu("s_add_u32 s29, s29, s32")]
    if WOPF == 2: o += [salu("s_sub_u32 s29, s29, 0x80000")]
    if WOPF == 3: o += [salu("s_add_u32 s3, s29, 0x40000"), salu("s_mov_b32 s29, 0x7ff00000")]
    gaps = {}
    for ds, rd in enumerate(k_reads(0, 1, VF)): gaps[2 * ds] = [rd]
    o += weave(qk_group(NQ, KF, first=True), gaps)
    for qt in range(NQ):
        s = S(qt); a = T + 2 * qt
        if qt == NQ - 1: o += [nop(3)]
        o += [v_max3(a, s, s + 1, s + 2), v_max(a, a, s + 3), v_mov(a + 1, a)]
    o += [nop(1)]
    for qt in range(NQ): o += [perm16(T + 2 * qt, T + 2 * qt + 1)]
    for qt in range(NQ):
        a = T + 2 * qt
        o += [v_max(a, a, a + 1), v_mov(a + 1, a)]
    o += [nop(1)]
    for qt in range(NQ): o += [perm32(T + 2 * qt, T + 2 * qt + 1)]
    for qt in range(NQ):
        a = T + 2 * qt
        o += [v_max(a, a, a + 1)] + [v_neg(NEGM(qt) + r, a) for r in range(4)] + [v_add(S(qt) + r, S(qt) + r, NEGM(qt)) for r in range(4)]
    elems = []
    for kt in range(4):
        per = {}
        for g, ins in sm_items(NQ, 0, kt):
            if kt == 3 and g >= W: continue
            per.setdefault((g - OFF) // 2, []).append(ins)
        for n in range(4 * NQ): elems.append(per.get(n, []))
    sk = []
    for n in range(len(elems) + 1):
        cur = []
        if n < len(elems): cur += [x for x in elems[n] if x.kind == "trans"]
        if n >= 1: cur += [x for x in elems[n - 1] if x.kind != "trans"]
        sk.append(cur)
    LAG = 9
    for n in range(LAG): o += sk[n]
    mf = qk_group(NQ, VF) + qk_group(NQ, KF) + qk_group(NQ, VF)
    gaps = {}
    for i in range(len(mf)): gaps[i] = list(sk[LAG + i])
    for ds, rd in enumerate(k_reads(0, 2, KF)): gaps[2 * ds].append(rd)
    for ds, rd in enumerate(k_reads(0, 3, VF)): gaps[H + 2 * ds].append(rd)
    place_items(gaps, kv_dma("V", 1, ("s34", 16384), "V1"), [3, 13, 23, 33])
    gaps[2 * H + 2].append(vmwait(["K1", "V0"], lgkm=0)); gaps[2 * H + 3].append(barrier())
    for ds, rd in enumerate(k_reads(1, 0, KF)): gaps[2 * H + 4 + 2 * ds].append(rd)
    o += weave(mf, gaps)
    for n in range(LAG + len(mf), len(sk)): o += sk[n]
    return o

def hs_load():
    return [v(f"v_lshlrev_b32 v{T}, 2, v{LANE}", [LANE], [T]), salu("s_lshl_b32 s32, s25, 5"),
            raw(f"buffer_load_dword v{HSV}, v{T}, s[{SRD_DBG}:{SRD_DBG+3}], s32 offen sc0 sc1", "vload", rd=[T], wr=[HSV], tag="hs")]

def tail(NQ):
    o = [comment("tail: PV(15)")]
    W = 8 * NQ; H = 4 * NQ
    o += hs_load()
    sp = sorted([(g, k, ins) for k, (g, ins) in enumerate(sm_items(NQ, 15, 3)) if g >= W], key=lambda x: (x[0], x[1]))
    for g, k, ins in sp:
        o += [ins]
        if ins.kind == "trans": o += [nop(0)]
    o += [nop(1)]
    mf = []; gaps = {}
    for w in range(4):
        vf = KF if (w & 1) == 0 else VF
        mf += pv_group(NQ, w, 1, vf)
        if w < 3:
            nvf = VF if (w & 1) == 0 else KF
            for k, rd in enumerate(v_reads(3, w + 1, nvf)): gaps.setdefault(w * H + k, []).append(rd)
    items = wo_dma(5) + wo_dma(6) + wo_dma(7) + wo_dma(8)
    place_items(gaps, items, [3 + 4 * k for k in range(len(items))])
    red = [[v_mov(T + qt, L(qt)) for qt in range(NQ)], [perm16(L(qt), T + qt) for qt in range(NQ)],
           [x for qt in range(NQ) for x in (v_add(L(qt), L(qt), T + qt), v_mov(T + qt, L(qt)))],
           [perm32(L(qt), T + qt) for qt in range(NQ)], [v_add(L(qt), L(qt), T + qt) for qt in range(NQ)],
           [v_rcp(L(qt), L(qt)) for qt in range(NQ)]]
    g = 9
    for grp in red:
        for x in grp:
            gaps.setdefault(g, []).append(x); g += 1
        g += 1
    o += weave(mf, gaps)
    return o

def handshake():
    o = [salu("s_mov_b32 s31, 0x40000"), vmwait(["hs"]), label("L_hs")]
    o += [raw(f"v_readlane_b32 s32, v{HSV}, 0", "valu", rd=[HSV])]
    for k in range(1, 8):
        o += [raw(f"v_readlane_b32 s27, v{HSV}, {k}", "valu", rd=[HSV]), salu("s_add_u32 s32, s32, s27")]
    o += [salu("s_lshr_b32 s27, s32, 8"), salu("s_and_b32 s32, s32, 0xff"), salu("s_add_u32 s32, s32, s27"),
          salu("s_cmp_eq_u32 s32, 32"), branch("s_cbranch_scc1 L_hs_ok"),
          salu("s_sub_u32 s31, s31, 1"), salu("s_cmp_eq_u32 s31, 0"), branch("s_cbranch_scc1 L_hs_ok"), raw("s_sleep 8")]
    retry = hs_load() + [wait(vm=0), branch("s_branch L_hs")]
    ok = [label("L_hs_ok"), raw(f"v_readlane_b32 s27, v{HSV}, s28", "valu", rd=[HSV])]
    return o, retry, ok

EW = int(opt("ew", "2")); EW2 = int(opt("ew2", "2"))
def epilogue(NQ, flags, name):
    o = [label(name)]
    q = []
    nf = 4 * NQ
    for f in range(nf):
        qt, m = divmod(f, 4)
        R = 160 + 8 * (f % 5)
        s = f // 2
        if (f & 1) == 0: o += [vmwait([f"wo{s}"])]
        o += wo_reads(s)[4 * (f & 1):4 * (f & 1) + 4]
        o += [acc_rd(R + k, O(qt, 2 * m) + k) for k in range(8)]
        e = f - (nf - 4 * EW)
        if e >= 0:
            if e % 4 == 0: o += [lgwait([f"wr{e // 4}"])]; q = wo_dma(10 + e // 4)
            o += q[e % 4]
        o += [v_mul(R + k, R + k, L(qt)) for k in range(8)]
        o += [v_cvt(R + k, R + 2 * k, R + 2 * k + 1) for k in range(4)]
        if m == 0: o += [salu(f"s_mov_b32 s32, {qt * 131072}")]
        o += [gstore4(R, LANE16, SRD_OW, "s32", 1024 * m, tag="o", flags=flags)]
    for s in range(EW, EW + EW2): o += [lgwait([f"wr{s}"])] + flat(wo_dma(10 + s))
    o += [v(f"v_mov_b32 v{HSV}, 1", [], [HSV]), vmwait(["o"]),
          raw(f"buffer_store_dword v{HSV}, v{L0V}, s[{SRD_FL}:{SRD_FL+3}], s53 offen{flags}", "vstore", rd=[L0V], tag="fl")]
    return o

def oproj():
    NQ = 5
    o = [label("L_merge")] + ts(10)
    def OACC(nt, t): return A + 4 * (t * 4 + nt)
    def OB(buf, t, mm): return A + 80 + buf * 40 + (t * 2 + mm) * 4
    for s in range(EW + EW2, 10): o += [lgwait([f"wr{s}"])] + flat(wo_dma(10 + s))
    for s in range(10, 16):
        o += [vmwait([f"wo{s}"])] + wo_reads(s)
        if s > 10: o += [lgwait([f"wr{s-1}"])] + flat(wo_dma(s - 1 + 10))
    o += [lgwait(["wr15"])] + flat(wo_dma(25))
    o += [salu("s_mul_i32 s27, s25, 20"), salu("s_mul_i32 s32, s55, 5"), salu("s_add_u32 s27, s27, s32"),
          salu("s_lshl_b32 s27, s27, 17"), salu("s_lshl_b32 s32, s24, 15"), salu("s_add_u32 s27, s27, s32")]
    o += srd(SRD_OR, 50, 51, "s27", 5 * 131072)
    o += [salu("s_cmp_eq_u32 s55, 3"), salu(f"s_cselect_b32 s{SRD_OR+2}, {4 * 131072}, s{SRD_OR+2}")]
    o += [salu("s_mul_i32 s27, s25, 311296")] + srd(SRD_OUT, 46, 47, "s27", 311296)
    o += [salu("s_lshl_b32 s30, s25, 2"), salu("s_add_u32 s30, s30, s55"), salu("s_lshl_b32 s30, s30, 2"), salu("s_add_u32 s30, s30, s24"),
          salu("s_lshl_b32 s30, s30, 7"), v(f"v_and_b32 v{T}, 7, v{LANE}", [LANE], [T]), v(f"v_lshlrev_b32 v{T}, 2, v{T}", [T], [T]),
          salu("s_mov_b32 s31, 0x40000")] + ts(11)
    o += [label("L_poll"),
          raw(f"buffer_load_dword v{HSV}, v{T}, s[{SRD_FL}:{SRD_FL+3}], s30 offen sc0 sc1", "vload", rd=[T], wr=[HSV], tag="poll"), wait(vm=0),
          v(f"v_cmp_eq_u32 vcc, 0, v{HSV}", [HSV], []), salu("s_sub_u32 s31, s31, 1"), nop(3),
          branch("s_cbranch_vccz L_go"), salu("s_cmp_eq_u32 s31, 0"), branch("s_cbranch_scc0 L_poll"), label("L_go")] + ts(12)
    def oload(ps, t):
        return own([[salu(f"s_mov_b32 s30, {t * 131072 + (ps >> 1) * 4096}"), gload4(OB(ps & 1, t, 0), LANE16, SRD_OR, "s30", (ps & 1) * 2048, tag=f"o{ps}_{t}", flags=OLDFLAGS)],
                    [gload4(OB(ps & 1, t, 1), LANE16, SRD_OR, "s30", (ps & 1) * 2048 + 1024, tag=f"o{ps}_{t}", flags=OLDFLAGS)]])
    for ps in range(2):
        for t in range(NQ): o += flat(oload(ps, t))
    mf = []; gaps = {}
    for ps in range(16):
        b = len(mf)
        for t in range(NQ):
            gaps.setdefault(len(mf) - 1, []).append(vmwait([f"o{ps}_{t}"]))
            for nt in range(4):
                for mm in range(2):
                    c = None if (ps == 0 and mm == 0) else OACC(nt, t)
                    mf.append(mfma(OACC(nt, t), AF(2 * ps + mm, nt), OB(ps & 1, t, mm), c))
            if ps + 2 < 16: place_items(gaps, oload(ps + 2, t), [len(mf), len(mf) + 2])
        if 1 <= ps <= 8:
            for e in range(2):
                s = 2 * (ps - 1) + 16 + e
                gaps.setdefault(b + 20 * e, []).append(vmwait([f"wo{s}"]))
                for k, rd in enumerate(wo_reads(s)): gaps.setdefault(b + 20 * e + 1 + 2 * k, []).append(rd)
        if 2 <= ps <= 4:
            for e in range(2):
                s = 2 * (ps - 2) + 16 + e
                gaps.setdefault(b + 20 * e + 2, []).append(lgwait([f"wr{s}"]))
                place_items(gaps, wo_dma(s + 10), [b + 20 * e + 4, b + 20 * e + 6, b + 20 * e + 12, b + 20 * e + 14])
    o += weave(mf, gaps)
    o += ts(13) + [comment("reduce"), barrier(), nop(7)]
    PW = 80 * 272
    g, q, t0, t1, f, r = G_, Q_, T, T + 1, T + 2, T + 3
    o += [salu(f"s_mul_i32 s27, s24, {PW}"),
          v(f"v_mul_u32_u24 v{t0}, 272, v{q}", [q], [t0]), v(f"v_lshl_add_u32 v{t0}, v{g}, 4, v{t0}", [g, t0], [t0]),
          v(f"v_add_u32 v{t0}, s27, v{t0}", [t0], [t0])]
    for t in range(NQ):
        for nt in range(4): o += [ds_w128(t0, OACC(nt, t), t * 16 * 272 + nt * 64)]
    tid = T + 4
    o += [salu("s_lshl_b32 s27, s24, 6"), v(f"v_add_u32 v{tid}, s27, v{LANE}", [LANE], [tid]),
          v(f"v_lshrrev_b32 v{t0}, 3, v{tid}", [tid], [t0]), v(f"v_and_b32 v{t1}, 7, v{tid}", [tid], [t1]),
          v(f"v_mul_u32_u24 v{f}, 272, v{t0}", [t0], [f]), v(f"v_lshl_add_u32 v{f}, v{t1}, 5, v{f}", [t1, f], [f]),
          v(f"v_add_u32 v{r}, {2*PW}, v{f}", [f], [r]),
          v(f"v_lshlrev_b32 v{t0}, 10, v{t0}", [t0], [t0]), v(f"v_lshl_add_u32 v{t0}, v{t1}, 4, v{t0}", [t1, t0], [t0]),
          salu("s_mul_i32 s27, s55, 81920"), salu("s_lshl_b32 s32, s54, 7"), salu("s_add_u32 s27, s27, s32")]
    o += [wait(lgkm=0), barrier()]
    for rnd in range(3):
        if rnd == 2:
            o += ts_dump(16, 64)
            o += [salu("s_cmp_ge_u32 s24, 2"), branch("s_cbranch_scc1 L_end"), salu("s_cmp_ge_u32 s55, 3"), branch("s_cbranch_scc1 L_end")]
        R = 8 + rnd * 32
        for w in range(4):
            for h in range(2):
                o += [ds_r128(R + w * 8 + h * 4, f if w < 2 else r, (w & 1) * PW + rnd * 32 * 272 + h * 16)]
        for k in range(8): o += [v_add(R + k, R + k, R + 8 + k), v_add(R + 16 + k, R + 16 + k, R + 24 + k)]
        for k in range(8): o += [v_add(R + k, R + k, R + 16 + k)]
        o += [v_cvt(R + k, R + 2 * k, R + 2 * k + 1) for k in range(4)]
        o += [gstore4(R, t0, SRD_OUT, "s27"), salu("s_add_u32 s27, s27, 32768")]
    return o

def kernel():
    NQ = 5
    pre = setup() + qproj(NQ) + period0(NQ) + [salu("s_mov_b32 s31, 4")] + ts(6)
    b1 = [label("L_loop")] + loop_period(NQ, 1) + [salu("s_sub_u32 s31, s31, 1"), salu("s_cmp_eq_u32 s31, 0"), branch("s_cbranch_scc1 L_p14")]
    b2 = loop_period(NQ, 2) + loop_period(NQ, 3) + loop_period(NQ, 4) + [branch("s_branch L_loop")]
    p14 = [label("L_p14")] + period(NQ, 14, kv_dma("V", 3, ("s30", 16384), "V15") + wo_dma(0) + wo_dma(1), vmwait(["kv"], lgkm=0))
    p15 = period(NQ, 15, wo_dma(2) + wo_dma(3) + wo_dma(4), vmwait(["V15"], lgkm=0), last=True)
    hs, retry, ok = handshake()
    mid = ts(7) + tail(NQ) + ts(8) + [barrier()] + flat(wo_dma(9))
    mid += [salu("s_mul_i32 s27, s25, 20"), salu("s_mul_i32 s32, s24, 5"), salu("s_add_u32 s27, s27, s32"),
            salu("s_lshl_b32 s27, s27, 5"), salu("s_add_u32 s27, s27, s26"), salu("s_lshl_b32 s27, s27, 12")] + srd(SRD_OW, 50, 51, "s27", 5 * 131072)
    mid += hs
    ok += ts(9) + [salu(f"s_cmp_eq_u32 s27, {33 if FORCE_SLOW else 32}"), branch("s_cbranch_scc0 L_epi_slow")]
    ef = epilogue(NQ, "", "L_epi_fast")
    es = epilogue(NQ, " sc0 sc1", "L_epi_slow") + [branch("s_branch L_merge")]
    op = oproj()
    head = pre + b1 + b2 + b1 + b2 + b1 + p14 + p15 + mid + ok
    for e in (ef, es):
        path = head + e + op
        vm_waits(path); lg_waits(path)
        insert_lgkm(path)
    for e in (ef, es):
        path = head + e + op
        check_hazards(expand(path), "k"); check_own(path)
    seq = expand(pre) + [raw(".p2align 6", "label")] + expand(b1 + b2 + p14 + p15 + mid + retry + ok + ef + op)
    seq += [label("L_end"), raw("s_endpgm")] + expand(es)
    return seq

def kd(name, nv=512, acc=256):
    return f""".section .rodata,"a"
.p2align 6
.amdhsa_kernel {name}
  .amdhsa_next_free_vgpr {nv}
  .amdhsa_next_free_sgpr 102
  .amdhsa_accum_offset {acc}
  .amdhsa_group_segment_fixed_size 0
  .amdhsa_kernarg_size 64
  .amdhsa_user_sgpr_count 2
  .amdhsa_user_sgpr_kernarg_segment_ptr 1
  .amdhsa_system_sgpr_workgroup_id_x 1
  .amdhsa_float_denorm_mode_32 3
.end_amdhsa_kernel
"""
def main():
    args = [a for a in sys.argv[1:] if not a.startswith("--")]
    out = args[0] if args else f"cdna_kernels/{NAME}.s"
    hdr = open(f"cdna_kernels/{NAME}.s.ref").read().split("; Override launch")[0]
    k1 = f"{NAME}_kernel"
    s = hdr + "; @launch grid=(256,1,1) block=(256,1,1) lds=163840\n"
    s += '.amdgcn_target "amdgcn-amd-amdhsa--gfx950"\n'
    s += f".text\n.globl {k1}\n.p2align 8\n.type {k1},@function\n{k1}:\n" + text(kernel()) + kd(k1)
    open(out, "w").write(s)
    print("wrote", out, len(s), "bytes")
main()
```

```python
import sys, json, subprocess, os
KERN = '''.text
.globl {name}
.p2align 8
.type {name},@function
{name}:
    s_load_dwordx2 s[4:5], s[0:1], 0
    s_load_dwordx2 s[6:7], s[0:1], 8
    s_waitcnt lgkmcnt(0)
    s_mov_b32 s8, s4
    s_mov_b32 s9, s5
    s_mov_b32 s10, 0x10000000
    s_mov_b32 s11, 0x20000
    s_mov_b32 s12, s6
    s_mov_b32 s13, s7
    s_mov_b32 s14, 0x1000000
    s_mov_b32 s15, 0x20000
    v_lshrrev_b32 v1, 6, v0
    s_nop 0
    v_readfirstlane_b32 s16, v1
    v_and_b32 v2, 63, v0             ; lane
{init}
    s_waitcnt vmcnt(0) lgkmcnt(0)
    s_barrier
    s_memtime s[20:21]
    s_memrealtime s[24:25]
    s_waitcnt lgkmcnt(0)
    s_mov_b32 s30, {iters}
    .p2align 6
L_loop_{name}:
{body}
    s_sub_u32 s30, s30, 1
    s_cmp_lg_u32 s30, 0
    s_cbranch_scc1 L_loop_{name}
    s_memtime s[28:29]
    s_nop 15
    s_nop 15
    s_waitcnt vmcnt(0) lgkmcnt(0)
    s_memtime s[22:23]
    s_memrealtime s[26:27]
    s_waitcnt lgkmcnt(0)
    s_sub_u32 s22, s22, s20
    s_sub_u32 s26, s26, s24
    s_sub_u32 s28, s28, s20
    s_mul_i32 s17, s2, {nwaves}
    s_add_u32 s17, s17, s16
    s_lshl_b32 s17, s17, 4
    v_mov_b32 v4, s22
    v_mov_b32 v5, s26
    v_mov_b32 v6, s28
    v_mov_b32 v3, s17
    v_cmp_eq_u32 vcc, 0, v2
    s_and_saveexec_b64 s[18:19], vcc
    buffer_store_dwordx3 v[4:6], v3, s[12:15], 0 offen
    s_waitcnt vmcnt(0)
    s_endpgm
.section .rodata,"a"
.p2align 6
.amdhsa_kernel {name}
  .amdhsa_next_free_vgpr {nvgpr}
  .amdhsa_next_free_sgpr 102
  .amdhsa_accum_offset {accoff}
  .amdhsa_group_segment_fixed_size 0
  .amdhsa_kernarg_size 16
  .amdhsa_user_sgpr_count 2
  .amdhsa_user_sgpr_kernarg_segment_ptr 1
  .amdhsa_system_sgpr_workgroup_id_x 1
.end_amdhsa_kernel
'''
META = '''  - .name: {name}
    .symbol: {name}.kd
    .kernarg_segment_size: 16
    .kernarg_segment_align: 8
    .group_segment_fixed_size: 0
    .private_segment_fixed_size: 0
    .wavefront_size: 64
    .sgpr_count: 102
    .vgpr_count: {nvgpr}
    .max_flat_workgroup_size: {block}
    .args:
      - {{.name: kernargs, .size: 16, .offset: 0, .value_kind: by_value}}
'''
def load_rand(lo, hi):
    s = []
    s.append("    v_lshlrev_b32 v3, 4, v0")
    for i, r in enumerate(range(lo, hi, 4)):
        s.append(f"    s_mov_b32 s31, {i*16384}")
        s.append(f"    buffer_load_dwordx4 v[{r}:{r+3}], v3, s[8:11], s31 offen")
    s.append("    s_waitcnt vmcnt(0)")
    return "\n".join(s)
def zero(lo, hi):
    return "\n".join(f"    v_mov_b32 v{r}, 0" for r in range(lo, hi))

class Suite:
    def __init__(self, tag):
        self.tag = tag; self.tests = []; self.k = []; self.m = []
        os.makedirs(f"co", exist_ok=True)
    def add(self, name, init, body, iters, norm, block=256, grid=256, nvgpr=256, accoff=256, lds=0, **kw):
        kname = f"k{len(self.tests)}_{self.tag}_kernel"
        body = body.replace("@@", kname); init = init.replace("@@", kname)
        self.k.append(KERN.format(name=kname, init=init, body=body, iters=iters, nwaves=block // 64, nvgpr=nvgpr, accoff=accoff))
        self.m.append(META.format(name=kname, nvgpr=nvgpr, block=block))
        t = dict(name=name, co=f"co/{self.tag}.co", kernel=kname, grid=[grid, 1, 1], block=[block, 1, 1], lds=lds, norm=norm * iters)
        t.update(kw)
        self.tests.append(t)
    def write(self):
        p = f"co/{self.tag}"
        asm = '.amdgcn_target "amdgcn-amd-amdhsa--gfx950"\n' + "".join(self.k) + ".amdgpu_metadata\n---\namdhsa.version: [1, 2]\namdhsa.kernels:\n" + "".join(self.m) + "...\n.end_amdgpu_metadata\n"
        open(p + ".s", "w").write(asm)
        r = subprocess.run(["clang", "-x", "assembler", "-target", "amdgcn-amd-amdhsa", "-mcpu=gfx950", p + ".s", "-o", p + ".co"], capture_output=True, text=True)
        if r.returncode:
            print(r.stderr[:3000]); raise SystemExit(1)
        json.dump(dict(tests=self.tests), open(f"work/{self.tag}.json", "w"))
        files = ["work/mb_run.py", f"work/{self.tag}.json", "cdna_kernels/cdna_launch.py", "cdna_kernels/cdna_unwritten_srd_check.py", f"work/co/{self.tag}.co"]
        print(json.dumps(files))
```

```python
from mb_gen import *
S = Suite("mb12")
initm = load_rand(8, 72) + "\n" + zero(72, 256) + "\n    v_lshlrev_b32 v6, 4, v2\n    s_lshl_b32 s44, s2, 20\n    s_mov_b32 m0, 0\n"
def mf16(i, extra):
    a = 8 + (i % 8) * 4; b = 40 + ((i*3+1) % 8) * 4; d = 128 + ((i//4) % 16) * 4
    s = f"    v_mfma_f32_16x16x32_bf16 v[{d}:{d+3}], v[{a}:{a+3}], v[{b}:{b+3}], v[{d}:{d+3}]"
    if extra == "e": s += "\n    v_exp_f32 v72, v9"
    if extra == "r": s += f"\n    ds_read_b128 v[{200+4*(i%8)}:{203+4*(i%8)}], v6 offset:{(i*1024)%32768}"
    if extra == "n": s += "\n    s_nop 3"
    return s
def body(extra, nm, pace):
    st = []
    for it in range(32):
        st.append("\n".join("    buffer_load_dwordx4 v6, s[8:11], s44 offen nt lds\n    s_add_u32 s44, s44, 1024" + ("\n" + "\n".join(mf16(k, "") for k in range(pace)) if pace else "") for _ in range(32)))
        st.append(f"    s_memrealtime s[50:51]\n    s_waitcnt lgkmcnt(0)\n    v_writelane_b32 v100, s50, {it}")
    stream = "\n".join(st) + "\n    s_lshl_b32 s42, s2, 8\n    s_add_u32 s42, s42, 0x100000\n    v_lshlrev_b32 v12, 2, v2\n    v_subrev_u32 v100, s24, v100\n    buffer_store_dword v100, v12, s[12:15], s42 offen\n"
    mm = "\n".join(mf16(i, extra) for i in range(64))
    comp = f"    s_mov_b32 s46, {nm}\nL_c_@@:\n{mm}\n    s_sub_u32 s46, s46, 1\n    s_cmp_lg_u32 s46, 0\n    s_cbranch_scc1 L_c_@@\n" if extra is not None else ""
    return f"    s_cmp_eq_u32 s16, 3\n    s_cbranch_scc1 L_w3_@@\n{comp}    s_branch L_e_@@\nL_w3_@@:\n{stream}L_e_@@:\n"
S.add("stream only", initm, body(None, 75, 0), 1, 1, lds=140000, flush=True, prog=True, reps=6)
S.add("stream + mfma(nop: 2/3 duty)", initm, body("n", 55, 0), 1, 1, lds=140000, flush=True, prog=True, reps=8)
S.add("stream + mfma+exp", initm, body("e", 75, 0), 1, 1, lds=140000, flush=True, prog=True, reps=8)
S.add("stream + mfma+lds", initm, body("r", 75, 0), 1, 1, lds=140000, flush=True, prog=True, reps=8)
S.add("stream(3 mfma/dma) + mfma+exp", initm, body("e", 75, 3), 1, 1, lds=140000, flush=True, prog=True, reps=8)
S.write()
```

```python
from mb_gen import *
S = Suite("mb14")
initm = load_rand(8, 72) + "\n" + zero(72, 256) + "\n    v_lshlrev_b32 v6, 4, v2\n    s_lshl_b32 s44, s2, 20\n    s_mov_b32 m0, 0x10000\n"
def mf16(i, extra):
    a = 8 + (i % 8) * 4; b = 40 + ((i*3+1) % 8) * 4; d = 128 + ((i//4) % 16) * 4
    s = f"    v_mfma_f32_16x16x32_bf16 v[{d}:{d+3}], v[{a}:{a+3}], v[{b}:{b+3}], v[{d}:{d+3}]"
    if extra == "x":
        if i % 2 == 0: s += "\n    v_exp_f32 v72, v9"
        elif i % 4 == 1: s += f"\n    ds_read_b128 v[{200+4*(i%8)}:{203+4*(i%8)}], v6 offset:{(i*256)%32768 // 1024 * 1024}\n    v_add_f32 v73, v72, v73"
        else: s += "\n    v_add_f32 v74, v72, v74\n    v_cvt_pk_bf16_f32 v75, v72, v73"
    return s
def body(cl, per, fl):
    one = []
    k = 0
    for c in range(32 // cl):
        for j in range(cl):
            one.append(f"    buffer_load_dwordx4 v6, s[8:11], s44 offen{fl} lds\n    s_add_u32 s44, s44, 1024\n" + mf16(k, "")); k += 1
        for j in range(per * cl // 32 - cl):
            one.append(mf16(k, "x")); k += 1
    one = "\n".join(one)
    stream = f"    s_mov_b32 s46, 0\nL_s_@@:\n{one}\n    s_memrealtime s[50:51]\n    s_waitcnt lgkmcnt(0)\n    s_mov_b32 s47, m0\n    s_mov_b32 m0, s46\n    v_writelane_b32 v100, s50, m0\n    s_mov_b32 m0, s47\n    s_add_u32 s46, s46, 1\n    s_cmp_lt_u32 s46, 32\n    s_cbranch_scc1 L_s_@@\n"
    stream += "    s_lshl_b32 s42, s2, 8\n    s_add_u32 s42, s42, 0x100000\n    v_lshlrev_b32 v12, 2, v2\n    v_subrev_u32 v100, s24, v100\n    buffer_store_dword v100, v12, s[12:15], s42 offen\n"
    mm = "\n".join(mf16(i, "x") for i in range(64))
    comp = f"    s_mov_b32 s46, 80\nL_c_@@:\n{mm}\n    s_sub_u32 s46, s46, 1\n    s_cmp_lg_u32 s46, 0\n    s_cbranch_scc1 L_c_@@\n"
    return f"    s_cmp_eq_u32 s16, 3\n    s_cbranch_scc1 L_w3_@@\n{comp}    s_branch L_e_@@\nL_w3_@@:\n{stream}L_e_@@:\n"
for per in (128, 144):
    for cl in (1, 4, 16):
        S.add(f"per{per} cluster{cl} nt", initm, body(cl, per if cl > 1 else 128 if per == 128 else 160, " nt"), 1, 1, lds=140000, flush=True, prog=True, reps=8)
S.write()
```

```python
from mb_gen import *
S = Suite("mb16")
ldsinit = "    v_lshlrev_b32 v6, 4, v0\n" + "\n".join(f"    ds_write_b128 v6, v[{8+4*(i%16)}:{11+4*(i%16)}] offset:{i*4096 % 65536}" for i in range(16)) + \
   "\n    v_lshlrev_b32 v6, 4, v2\n    v_lshlrev_b32 v7, 3, v2\n"
initm = load_rand(8, 72) + "\n" + zero(72, 256) + "\n" + ldsinit + "    s_mov_b32 s40, 0x007f007f\n    s_mov_b32 s41, 0x3f003f00\n" + \
   "\n".join(f"    v_and_b32 v{r}, s40, v{r}\n    v_or_b32 v{r}, s41, v{r}" for r in range(56, 72)) + "\n" + \
   "\n".join(f"    v_mov_b32 v{r}, 0x3f803f80" for r in range(88, 92)) + "\n"
def mf(i):
    j = i % 16
    if j < 8:
        a = 8 + (i % 4) * 4; b = 24 + ((i * 3 + 1) % 8) * 4; d = 128 + ((i // 4) % 8) * 4
    else:
        a = 8 + ((i + 1) // 2 % 4) * 4; b = 56 + (i % 4) * 4; d = 160 + ((i // 2) % 8) * 4
    return f"    v_mfma_f32_16x16x32_bf16 v[{d}:{d+3}], v[{a}:{a+3}], v[{b}:{b+3}], v[{d}:{d+3}]"
cnt = {}
def op(k):
    i = cnt.get(k, 0); cnt[k] = i + 1
    if k == "e": return f"    v_exp_f32 v{72+i%8}, v{8+i%48}"
    if k == "a": return f"    v_add_f32 v{80+i%4}, v{72+(i+4)%8}, v{80+i%4}"
    if k == "p": return f"    v_pk_add_f32 v[{80+2*(i%2)}:{81+2*(i%2)}], v[{72+2*((i+2)%4)}:{73+2*((i+2)%4)}], v[{80+2*(i%2)}:{81+2*(i%2)}]"
    if k == "d": return f"    v_dot2c_f32_bf16 v{80+i%4}, v{84+(i+2)%4}, v88"
    if k == "c": return f"    v_cvt_pk_bf16_f32 v{84+i%4}, v{72+(2*i+4)%8}, v{72+(2*i+5)%8}"
    if k == "r": return f"    ds_read_b128 v[{200+4*(i%8)}:{203+4*(i%8)}], v6 offset:{(i*1024)%65536}"
    if k == "t": return f"    ds_read_b64_tr_b16 v[{232+2*(i%8)}:{233+2*(i%8)}], v7 offset:{(i*512)%65536}"
    if k == "O": return f"    v_mfma_f32_16x16x32_bf16 v[192:195], v[88:91], v[{56+(i%4)*4}:{59+(i%4)*4}], v[192:195]"
def stream(pattern, nrep):
    s = []; mi = 0
    for _ in range(nrep):
        for ch in pattern:
            if ch == "M": s.append(mf(mi)); mi += 1
            else: s.append(op(ch))
    return "\n".join(s), mi
pats = {
 "adds": "MeMtaMeMacMeMtaMeMacMeMraMeMtacMeMraMeMac",
 "ones": "MeMtMeMcMeMtMeMcMeMrMeMtcMeMrMeMcO",
 "none": "MeMtMeMcMeMtMeMcMeMrMeMtcMeMrMeMc",
 "pk":   "MeMtMeMpcMeMtMeMpcMeMrMeMtpcMeMrMeMpc",
 "dot2": "MeMtMeMcdMeMtMeMcdMeMrMeMtcdMeMrMeMcd",
 "noexp": "MMtaMMacMMtaMMacMMraMMtacMMraMMac",
 "nolds": "MeMaMeMacMeMaMeMacMeMaMeMacMeMaMeMac",
 "bare": "MMMMMMMMMMMMMMMM",
}
for rep in range(2):
    for nm, pat in pats.items():
        body, n = stream(pat, 8)
        S.add(nm, initm, body, 20, n / 16, lds=100000)
S.write()
```

```python
from mb_gen import *
S = Suite("mb18")
def init(pat):
    s = "    s_and_b32 s47, s2, 7\n    s_lshl_b32 s47, s47, 20\n    s_mul_i32 s46, s16, 81920\n    s_add_u32 s47, s47, s46\n    v_lshlrev_b32 v7, 4, v2\n    s_mov_b32 s44, s47\n"
    s += "\n".join("    buffer_load_dwordx4 v[8:11], v7, s[8:11], s44 offen\n    s_add_u32 s44, s44, 1024" for _ in range(80)) + "\n    s_waitcnt vmcnt(0)\n"
    if pat == "contig": s += "    v_lshlrev_b32 v6, 4, v2\n"
    if pat == "frag64": s += "    v_and_b32 v6, 15, v2\n    v_lshlrev_b32 v6, 10, v6\n    v_lshrrev_b32 v5, 4, v2\n    v_lshl_add_u32 v6, v5, 4, v6\n"
    if pat == "frag32": s += "    v_and_b32 v6, 15, v2\n    v_lshlrev_b32 v6, 10, v6\n    v_lshrrev_b32 v5, 4, v2\n    v_lshl_add_u32 v6, v5, 5, v6\n"
    return s
def body(pat):
    out = []
    k = 0
    for c in range(8):
        for qt in range(5):
            for ks in range(2):
                if pat == "contig": off = (c * 10 + qt * 2 + ks) * 1024
                elif pat == "frag64": off = qt * 16384 + c * 128 + ks * 64
                else: off = qt * 16384 + c * 128 + ks * 16
                r = 16 + 4 * (k % 40); k += 1
                out.append(f"    s_add_u32 s44, s47, {off}\n    buffer_load_dwordx4 v[{r}:{r+3}], v6, s[8:11], s44 offen")
    return "\n".join(out)
for pat in ("contig", "frag64", "frag32"):
    S.add(pat, init(pat), body(pat), 1, 1, lds=140000)
S.write()
```
